```python
import torch

def _softmax(x, axis=-1):
    return torch.softmax(x, dim=axis)
def _gelu(x):
    return torch.nn.functional.gelu(x, approximate="tanh")
def _silu(x):
    return torch.nn.functional.silu(x)
def _sigmoid(x):
    return torch.sigmoid(x)
def _layernorm(x, axis=-1, eps=1e-5):
    m = x.mean(dim=axis, keepdim=True)
    v = x.var(dim=axis, keepdim=True, unbiased=False)
    return (x - m) / torch.sqrt(v + eps)
def _scatter_add(tgt, idx, src, axis=0):
    return tgt.clone().index_add_(axis, idx, src)
def _segment_sum(src, seg, n):
    out = torch.zeros((n,) + src.shape[1:], dtype=src.dtype)
    return out.index_add_(0, seg, src)
def _pad(x, pw):
    flat = tuple(v for pair in reversed(pw) for v in pair)
    return torch.nn.functional.pad(x, flat)

kernel_name = 'parallel_sum__ssm_conv_h3__glu_gated_swiglu__prompt'

def setup_inputs():

    _w = (lambda a: (lambda t: t.to(torch.bfloat16) if t.is_floating_point() else t)(torch.as_tensor(a)))
    def _A_setup():
        B, S, D = 1, 2048, 1024
        ks = 4
        return {
            "q": _w((lambda *s: torch.randn(*s, dtype=torch.bfloat16) * 0.05)(B, S, D)),
            "k": _w((lambda *s: torch.randn(*s, dtype=torch.bfloat16) * 0.2)(B, S, D)),
            "v": _w((lambda *s: torch.randn(*s, dtype=torch.bfloat16) * 0.2)(B, S, D)),
            "shift_k": _w((lambda *s: torch.randn(*s, dtype=torch.bfloat16) * 0.2)(D, ks) * 0.5),
            "ssm_k": _w((lambda *s: torch.randn(*s, dtype=torch.bfloat16) * 0.4)(D, S) * (1.0 / S ** 0.5)),
            "ssm_D": _w((lambda *s: torch.randn(*s, dtype=torch.bfloat16) * 0.2)(D)),
        }
    _A_in = _A_setup()

    def _B_setup():
        B, S, D, F = 1, 2048, 1024, 3584
        return {
            "x": _w((lambda *s: torch.randn(*s, dtype=torch.bfloat16) * 0.05)(B, S, D)),
            "w1": _w((lambda *s: torch.randn(*s, dtype=torch.bfloat16) * 0.2)(D, F) * (2.0 / D) ** 0.5),
            "w3": _w((lambda *s: torch.randn(*s, dtype=torch.bfloat16) * 0.2)(D, F) * (2.0 / D) ** 0.5),
            "w2": _w((lambda *s: torch.randn(*s, dtype=torch.bfloat16) * 0.2)(F, D) * (2.0 / F) ** 0.5),
        }
    _B_in = _B_setup()

    return {
        "A_q": _A_in["q"],
        "A_k": _A_in["k"],
        "A_v": _A_in["v"],
        "A_shift_k": _A_in["shift_k"],
        "A_ssm_k": _A_in["ssm_k"],
        "A_ssm_D": _A_in["ssm_D"],
        "B_x": _B_in["x"],
        "B_w1": _B_in["w1"],
        "B_w3": _B_in["w3"],
        "B_w2": _B_in["w2"],
    }

def reference(A_q, A_k, A_v, A_shift_k, A_ssm_k, A_ssm_D, B_x, B_w1, B_w3, B_w2):
    def _A_ref(q, k, v, shift_k, ssm_k, ssm_D):
        B, S, D = q.shape
        ks = shift_k.shape[-1]
        k_pad = _pad(k, ((0, 0), (ks - 1, 0), (0, 0)))
        k_shift = torch.zeros_like(k)
        for t in range(ks):
            k_shift = k_shift + k_pad[:, t:t + S, :] * shift_k[:, ks - 1 - t][None, None, :]
        kv = k_shift * v
        L = 2 * S
        kv_pad = _pad(kv, ((0, 0), (0, S), (0, 0)))
        kf_pad = _pad(ssm_k, ((0, 0), (0, S)))
        kv_f = (lambda x, axes=(-2,-1): torch.fft.rfft2(x.float(), dim=axes))(kv_pad[:, None, :, :], axes=(1, 2))
        kf_f = (lambda x, axes=(-2,-1): torch.fft.rfft2(x.float(), dim=axes))(kf_pad[:, None, :], axes=(1, 2))
        kf_f = (lambda x, *d: x.permute(*d))(kf_f, 1, 2, 0)
        y_f = kv_f * kf_f[None, :, :, :]
        y = (lambda x, s, axes=(-2,-1): torch.fft.irfft2(x, s=s, dim=axes).to(torch.bfloat16))(y_f, (1, L), axes=(1, 2))[:, 0, :S, :]
        y = y + kv * ssm_D[None, None, :]
        return q * y

    def _B_ref(x, w1, w3, w2):
        gate = torch.einsum("bsd,df->bsf", x, w1)
        up = torch.einsum("bsd,df->bsf", x, w3)
        h = _silu(gate) * up
        out = torch.einsum("bsf,fd->bsd", h, w2)
        return out

    x = A_q
    xn = _layernorm(x, axis=-1)
    return x + _A_ref(xn, A_k, A_v, A_shift_k, A_ssm_k, A_ssm_D) + _B_ref(xn, B_w1, B_w3, B_w2)
```

```python
class Asm:
    def __init__(self):
        self.lines = []
        self.lgkm = []
        self.vm = []
        self.nlabel = 0
    def __call__(self, s):
        self.lines.append("    " + s)
    def raw(self, s):
        self.lines.append(s)
    def label(self, name):
        self.lines.append(name + ":")
    def newlabel(self, base="L"):
        self.nlabel += 1
        return f"{base}_{self.nlabel}"
    def comment(self, s):
        self.lines.append("    ; " + s)
    def lds(self, s, tag=None):
        self(s)
        self.lgkm.append(tag)
    def vmem(self, s, tag=None):
        self(s)
        self.vm.append(tag)
    def _need(self, q, tags):
        last = -1
        for i, t in enumerate(q):
            if t in tags:
                last = i
        if last < 0:
            return None
        return len(q) - 1 - last
    def wait_lgkm(self, *tags, force=False):
        n = self._need(self.lgkm, tags)
        if n is None:
            return
        if n > 15:
            n = 14
        self(f"s_waitcnt lgkmcnt({n})")
        self.lgkm = self.lgkm[len(self.lgkm) - n:] if n > 0 else []
    def wait_vm(self, *tags):
        n = self._need(self.vm, tags)
        if n is None:
            return
        n = min(n, 63)
        self(f"s_waitcnt vmcnt({n})")
        self.vm = self.vm[len(self.vm) - n:] if n > 0 else []
    def wait_all_lgkm(self):
        self("s_waitcnt lgkmcnt(0)")
        self.lgkm = []
    def wait_all_vm(self):
        self("s_waitcnt vmcnt(0)")
        self.vm = []
    def text(self):
        return "\n".join(self.lines) + "\n"

def kernel_header(name):
    return f""".text
.globl {name}
.p2align 8
.type {name},@function
{name}:
"""

def kernel_desc(name, vgpr, sgpr=102, accum=None, extra=""):
    if accum is None:
        accum = min(256, (vgpr + 3) // 4 * 4)
    return f""".section .rodata,"a"
.p2align 6
.amdhsa_kernel {name}
  .amdhsa_next_free_vgpr {vgpr}
  .amdhsa_next_free_sgpr {sgpr}
  .amdhsa_accum_offset {accum}
  .amdhsa_group_segment_fixed_size 0
  .amdhsa_kernarg_size 104
  .amdhsa_user_sgpr_count 2
  .amdhsa_user_sgpr_kernarg_segment_ptr 1
  .amdhsa_system_sgpr_workgroup_id_x 1
{extra}.end_amdhsa_kernel
.text
"""
```

```python
S, D, F = 2048, 1024, 3584
MB = 1 << 20
WS_XN = 0
WS_KVT = 4 * MB
WS_H = 8 * MB
WS_YQ = 24 * MB
WS_STATS = 28 * MB
WS_SIZE = 256 * MB
KA_Q, KA_K, KA_V, KA_SK, KA_SSMK, KA_SSMD, KA_BX, KA_W1, KA_W3, KA_W2, KA_OUT, KA_DBG, KA_WS = [8*i for i in range(13)]

def srd(a, d, base, nbytes, add=0):
    if add:
        a(f"s_add_u32 s{d}, s{base}, {add}")
        a(f"s_addc_u32 s{d+1}, s{base+1}, 0")
    else:
        a(f"s_mov_b32 s{d}, s{base}")
        a(f"s_mov_b32 s{d+1}, s{base+1}")
    a(f"s_mov_b32 s{d+2}, {nbytes}")
    a(f"s_mov_b32 s{d+3}, 0x00020000")

def wave_reduce_add(a, v, t):
    a("s_nop 1")
    a(f"v_add_f32_dpp v{v}, v{v}, v{v} quad_perm:[1,0,3,2] row_mask:0xf bank_mask:0xf")
    a("s_nop 1")
    a(f"v_add_f32_dpp v{v}, v{v}, v{v} quad_perm:[2,3,0,1] row_mask:0xf bank_mask:0xf")
    a("s_nop 1")
    a(f"v_add_f32_dpp v{v}, v{v}, v{v} row_half_mirror row_mask:0xf bank_mask:0xf")
    a("s_nop 1")
    a(f"v_add_f32_dpp v{v}, v{v}, v{v} row_mirror row_mask:0xf bank_mask:0xf")
    a(f"v_mov_b32 v{t}, v{v}")
    a("s_nop 1")
    a(f"v_permlane16_swap_b32 v{v}, v{t}")
    a("s_nop 1")
    a(f"v_add_f32 v{v}, v{v}, v{t}")
    a(f"v_mov_b32 v{t}, v{v}")
    a("s_nop 1")
    a(f"v_permlane32_swap_b32 v{v}, v{t}")
    a("s_nop 1")
    a(f"v_add_f32 v{v}, v{v}, v{t}")

WS_STAMP = WS_STATS + (1 << 20)
def stamp_store(a, s_wv, nw_shift=3):
    a("s_sub_u32 s72, s72, s64")
    a("s_sub_u32 s74, s74, s66")
    a("s_sub_u32 s70, s70, s68")
    a("s_sub_u32 s68, s68, s64")
    srd(a, 76, 4, 1 << 20, add=WS_STAMP)
    a(f"s_lshl_b32 s80, s2, {nw_shift}")
    a(f"s_add_u32 s80, s80, s{s_wv}")
    a("s_lshl_b32 s80, s80, 5")
    a("v_mov_b32 v5, s80")
    a("v_mov_b32 v8, s72")
    a("v_mov_b32 v9, s74")
    a("v_mov_b32 v10, s68")
    a("v_mov_b32 v11, s70")
    a("v_mov_b32 v12, s66")
    a("v_mov_b32 v13, s67")
    a("s_nop 1")
    a("buffer_store_dwordx4 v[8:11], v5, s[76:79], 0 offen")
    a("buffer_store_dwordx2 v[12:13], v5, s[76:79], 0 offen offset:16")

def read_stamps(ws, nwg, nw, np, torch):
    st = ws[WS_STAMP:WS_STAMP + nwg*8*32].view(torch.int32).cpu().numpy().reshape(nwg, 8, 8)[:, :nw].reshape(-1, 8)
    tot, rt, pro, loop = [np.median(st[:, i]) for i in range(4)]
    rt0 = st[:, 4].astype(np.int64) & 0xffffffff
    span = ((rt0 + st[:, 1]).max() - rt0.min()) / 100
    return "total %d cyc, clock %.3f GHz, prologue %d, loop %d, epi %d, span %.2f us" % (tot, tot/rt/10, pro, loop, tot-pro-loop, span)
```

```python
from asmgen import *
from gen_common import *

CPY = 4160
UOFF = 4 * CPY
UB = 4608
WVB = UOFF + UB
CONV_LDS = 4 * WVB

def conv_body(a, lbl, s_ws, s_ssmk, s_ssmd, s_ch0, S_WV, ldsbase_s=None):
    S_KS = 8; S_US = 12; S_YS = 16; S_DS = 20
    AFR = 64
    BFR = 32
    ACC = 192
    NB = 8
    a(f"s_add_u32 s56, s{s_ch0}, s{S_WV}")
    a("s_lshl_b32 s57, s56, 12")
    a(f"s_add_u32 s{S_KS}, s{s_ssmk}, s57")
    a(f"s_addc_u32 s{S_KS+1}, s{s_ssmk+1}, 0")
    a(f"s_mov_b32 s{S_KS+2}, 4096")
    a(f"s_mov_b32 s{S_KS+3}, 0x00020000")
    a(f"s_add_u32 s58, s57, {WS_KVT}")
    a(f"s_add_u32 s{S_US}, s{s_ws}, s58")
    a(f"s_addc_u32 s{S_US+1}, s{s_ws+1}, 0")
    a(f"s_mov_b32 s{S_US+2}, 4096")
    a(f"s_mov_b32 s{S_US+3}, 0x00020000")
    srd(a, S_YS, s_ws, S*D*2, add=WS_YQ)
    srd(a, S_DS, s_ssmd, D*2)
    a(f"s_mul_i32 s59, s{S_WV}, {WVB}")
    a("v_lshlrev_b32 v3, 4, v2")
    for i in range(4):
        a(f"s_add_u32 m0, s59, {UOFF + i*1024}")
        a(f"s_mov_b32 s60, {i*1024}")
        a.vmem(f"buffer_load_dwordx4 v3, s[{S_US}:{S_US+3}], s60 offen lds", tag="u")
    for rr in range(5):
        r = 32 + rr*8
        a(f"v_add_u32 v4, {(rr*1024 - 32) & 0xffffffff:#x}, v3")
        a(f"v_add_u32 v5, {(rr*1024 - 16) & 0xffffffff:#x}, v3")
        a.vmem(f"buffer_load_dwordx4 v[{r}:{r+3}], v4, s[{S_KS}:{S_KS+3}], 0 offen", tag=("h", rr))
        a.vmem(f"buffer_load_dwordx4 v[{r+4}:{r+7}], v5, s[{S_KS}:{S_KS+3}], 0 offen", tag=("h", rr))
    a("s_lshl_b32 s57, s56, 1")
    a("v_mov_b32 v4, s57")
    a.vmem(f"buffer_load_ushort v6, v4, s[{S_DS}:{S_DS+3}], 0 offen", tag="D")
    a("v_mov_b32 v8, 0"); a("v_mov_b32 v9, 0"); a("v_mov_b32 v10, 0"); a("v_mov_b32 v11, 0")
    a(f"v_add_u32 v4, s59, v3")
    a("v_cmp_gt_u32 vcc, 32, v2")
    a("s_and_saveexec_b64 s[62:63], vcc")
    a.lds(f"ds_write_b128 v4, v[8:11] offset:{UOFF+4096}", tag="z")
    a("s_mov_b64 exec, s[62:63]")
    for rr in range(5):
        r = 32 + rr*8
        a.wait_vm(("h", rr))
        T = 72
        for i in range(5):
            a(f"v_alignbit_b32 v{T+i}, v{r+i+1}, v{r+i}, 16")
        if rr == 4:
            a("v_cmp_gt_u32 vcc, 4, v2")
            a("s_and_saveexec_b64 s[62:63], vcc")
        off = rr*1024
        for i in range(4):
            a(f"v_mov_b32 v{T+8+i}, v{r+1+i}")
            a(f"v_mov_b32 v{T+12+i}, v{T+1+i}")
        a.lds(f"ds_write_b128 v4, v[{r}:{r+3}] offset:{off}", tag="c")
        a.lds(f"ds_write_b128 v4, v[{T}:{T+3}] offset:{CPY+off}", tag="c")
        a.lds(f"ds_write_b128 v4, v[{T+8}:{T+11}] offset:{2*CPY+off}", tag="c")
        a.lds(f"ds_write_b128 v4, v[{T+12}:{T+15}] offset:{3*CPY+off}", tag="c")
        if rr == 4:
            a("s_mov_b64 exec, s[62:63]")
        a.wait_all_lgkm()
    a("v_and_b32 v4, 15, v2")
    a("v_add_u32 v4, 1, v4")
    a("v_and_b32 v5, 3, v4")
    a(f"v_mul_u32_u24 v5, {CPY}, v5")
    a("v_lshrrev_b32 v4, 2, v4")
    a("v_lshl_add_u32 v5, v4, 3, v5")
    a("v_lshrrev_b32 v7, 4, v2")
    a("v_lshl_add_u32 v5, v7, 4, v5")
    a("v_add_u32 v12, s59, v5")
    a("v_and_b32 v4, 15, v2")
    a("v_lshlrev_b32 v4, 5, v4")
    a(f"v_sub_u32 v4, {UOFF+480}, v4")
    a("v_lshl_add_u32 v4, v7, 4, v4")
    a("v_add_u32 v13, s59, v4")
    for i in range(32):
        a(f"v_mov_b32 v{ACC+i}, 0")
    a.wait_all_vm()
    def rd_A(slot, m):
        r = AFR + 4*slot
        a.lds(f"ds_read_b64 v[{r}:{r+1}], v12 offset:{64*m}", tag=("A", m))
        a.lds(f"ds_read_b64 v[{r+2}:{r+3}], v12 offset:{64*m+8}", tag=("A", m))
    def rd_B(idx, n):
        r = BFR + 4*(idx % NB)
        a.lds(f"ds_read_b128 v[{r}:{r+3}], v13 offset:{64*(63-n)}", tag=("B", idx))
    bidx = 0
    for ph in range(2):
        m0 = 32*ph
        ns = list(range(64)) if ph == 0 else list(range(32))
        work = []
        for n in ns:
            ms = [m for m in range(m0, m0+32) if (m + n) % 8 == 7 and m + n <= 63]
            if ms:
                work.append((n, ms))
        a_loaded = set()
        a_order = []
        for n, ms in work:
            for m in ms:
                if m not in a_order:
                    a_order.append(m)
        ai = 0
        PB = 4
        for w in range(min(PB, len(work))):
            rd_B(bidx + w, work[w][0])
            for m in work[w][1]:
                if m not in a_loaded:
                    rd_A(m - m0, m); a_loaded.add(m)
        for w, (n, ms) in enumerate(work):
            for mi, m in enumerate(ms):
                c = (m + n - 7)//8
                a.wait_lgkm(("B", bidx + w), ("A", m))
                br = BFR + 4*((bidx + w) % NB)
                ar = AFR + 4*(m - m0)
                a(f"v_mfma_f32_16x16x32_bf16 v[{ACC+4*c}:{ACC+4*c+3}], v[{ar}:{ar+3}], v[{br}:{br+3}], v[{ACC+4*c}:{ACC+4*c+3}]")
                if mi == 0 and w + PB < len(work):
                    rd_B(bidx + w + PB, work[w + PB][0])
                    for m2 in work[w + PB][1]:
                        if m2 not in a_loaded:
                            rd_A(m2 - m0, m2); a_loaded.add(m2)
        bidx += len(work)
    a("v_lshlrev_b32 v6, 16, v6")
    a("v_and_b32 v4, 15, v2")
    a("v_lshlrev_b32 v4, 5, v4")
    a("v_lshl_add_u32 v4, v7, 3, v4")
    a(f"v_sub_u32 v5, {UOFF + 4088 - 512*7}, v4")
    a("v_add_u32 v5, s59, v5")
    a("v_add_u32 v14, s59, v4")
    for c in range(8):
        a.lds(f"ds_read_b64 v[{32+2*c}:{33+2*c}], v5 offset:{512*(7-c)}", tag=("k", c))
    a("s_nop 7")
    a("s_nop 7")
    for c in range(8):
        a.wait_lgkm(("k", c))
        K = 32 + 2*c; A = ACC + 4*c; T = 64
        a(f"v_and_b32 v{T}, 0xffff0000, v{K+1}")
        a(f"v_lshlrev_b32 v{T+1}, 16, v{K+1}")
        a(f"v_and_b32 v{T+2}, 0xffff0000, v{K}")
        a(f"v_lshlrev_b32 v{T+3}, 16, v{K}")
        for r in range(4):
            a(f"v_mul_f32 v{T+r}, v{T+r}, v6")
        a(f"v_cvt_pk_bf16_f32 v{T+4}, v{T}, v{T+1}")
        a(f"v_cvt_pk_bf16_f32 v{T+5}, v{T+2}, v{T+3}")
        a(f"v_cvt_pk_bf16_f32 v{T+6}, v{A}, v{A+1}")
        a(f"v_cvt_pk_bf16_f32 v{T+7}, v{A+2}, v{A+3}")
        for p in range(2):
            a(f"v_lshlrev_b32 v{T}, 16, v{T+4+p}")
            a(f"v_and_b32 v{T+1}, 0xffff0000, v{T+4+p}")
            a(f"v_lshlrev_b32 v{T+2}, 16, v{T+6+p}")
            a(f"v_and_b32 v{T+3}, 0xffff0000, v{T+6+p}")
            a(f"v_add_f32 v{T}, v{T}, v{T+2}")
            a(f"v_add_f32 v{T+1}, v{T+1}, v{T+3}")
            a(f"v_cvt_pk_bf16_f32 v{T+8+p}, v{T}, v{T+1}")
        a.lds(f"ds_write_b64 v14, v[{T+8}:{T+9}] offset:{512*c}", tag="y")
    a.wait_all_lgkm()

def gen_conv(name="conv_kernel", nwg=256):
    a = Asm()
    a.raw(kernel_header(name))
    S_WV = 32
    a(f"s_cmp_ge_u32 s2, {nwg}")
    a(f"s_cbranch_scc1 {name}_end")
    a(f"s_load_dwordx2 s[4:5], s[0:1], {KA_WS}")
    a(f"s_load_dwordx2 s[50:51], s[0:1], {KA_SSMK}")
    a(f"s_load_dwordx2 s[52:53], s[0:1], {KA_SSMD}")
    a("v_lshrrev_b32 v1, 6, v0")
    a("v_and_b32 v2, 63, v0")
    a("s_nop 0")
    a(f"v_readfirstlane_b32 s{S_WV}, v1")
    a("s_lshl_b32 s33, s2, 2")
    a("s_waitcnt lgkmcnt(0)")
    conv_body(a, name, 4, 50, 52, 33, S_WV)
    a("s_barrier")
    a("v_lshlrev_b32 v4, 2, v0")
    a(f"v_add_u32 v7, {2*WVB}, v4")
    for i in range(4):
        for ch in range(4):
            a.lds(f"ds_read_b32 v{32+4*i+ch}, v{4 if ch < 2 else 7} offset:{(ch%2)*WVB + i*1024}", tag=("t", i))
    a("s_mov_b32 s40, 0x05040100")
    a("s_mov_b32 s41, 0x07060302")
    a("s_lshl_b32 s42, s2, 14")
    a("v_lshlrev_b32 v5, 4, v0")
    a("v_add_u32 v5, s42, v5")
    for i in range(4):
        a.wait_lgkm(("t", i))
        r = 32 + 4*i; T = 64 + 4*i
        a(f"v_perm_b32 v{T}, v{r+1}, v{r}, s40")
        a(f"v_perm_b32 v{T+1}, v{r+3}, v{r+2}, s40")
        a(f"v_perm_b32 v{T+2}, v{r+1}, v{r}, s41")
        a(f"v_perm_b32 v{T+3}, v{r+3}, v{r+2}, s41")
        a(f"v_add_u32 v6, {i*4096}, v5")
        a(f"buffer_store_dwordx4 v[{T}:{T+3}], v6, s[16:19], 0 offen")
    a.label(f"{name}_end")
    a("s_endpgm")
    return a.text() + kernel_desc(name, 224, 72)
```

```python
from asmgen import *
from gen_common import *

STG = 30720
XB = 16384
WB = 7168
NS = 5
LDS_BYTES = STG * NS

def gen_gemm1b(name="gemm1_kernel", PD=6, dma_groups=None, no_dma=False, no_lds=False, stamp=False, nwg=256, xsrc_ws=True):
    a = Asm()
    a.raw(kernel_header(name))
    AF = 32
    BF = 88
    GA = 128
    VA0, VA1, VAS, VB = 8, 9, 10, 11
    VDX = 12
    VDW = 16
    S_XSRD = 8; S_WSRD = [12, 16, 20, 24]; S_HSRD = 28
    S_WV = 32; S_XO = 33; S_WO = 34; S_SLOT = [36, 37, 38, 39]; S_XSLOT = [40, 41, 42, 43]; S_CNT = 35
    S_RT = 44; S_CT = 45; S_NEGL2E = 46; S_RD = 47; S_DM = 48; S_DELTA = 49
    a(f"s_cmp_ge_u32 s2, {nwg}")
    a(f"s_cbranch_scc1 {name}_end")
    if stamp:
        a("s_memtime s[64:65]")
        a("s_memrealtime s[66:67]")
    a(f"s_load_dwordx2 s[4:5], s[0:1], {KA_WS}")
    a(f"s_load_dwordx2 s[50:51], s[0:1], {KA_W1}")
    a(f"s_load_dwordx2 s[52:53], s[0:1], {KA_W3}")
    a("v_lshrrev_b32 v1, 6, v0")
    a("v_and_b32 v2, 63, v0")
    a("s_nop 0")
    a(f"v_readfirstlane_b32 s{S_WV}, v1")
    a("s_and_b32 s54, s2, 7")
    a("s_lshr_b32 s55, s2, 3")
    a("s_and_b32 s56, s54, 1")
    a("s_lshl_b32 s56, s56, 2")
    a("s_and_b32 s57, s55, 3")
    a(f"s_add_u32 s{S_RT}, s56, s57")
    a("s_lshr_b32 s56, s54, 1")
    a("s_lshl_b32 s56, s56, 3")
    a("s_lshr_b32 s57, s55, 2")
    a(f"s_add_u32 s{S_CT}, s56, s57")
    a("s_waitcnt lgkmcnt(0)")
    srd(a, S_XSRD, 4, S*D*2, add=WS_XN)
    srd(a, S_HSRD, 4, S*F*2, add=WS_H)
    a(f"s_mov_b32 s{S_NEGL2E}, 0xbfb8aa3b")
    a("v_lshrrev_b32 v3, 4, v2")
    a("v_sub_u32 v3, 0, v3")
    a("v_xor_b32 v3, v3, v2")
    a("v_and_b32 v3, 3, v3")
    a("v_lshrrev_b32 v4, 2, v2")
    a(f"s_lshl_b32 s54, s{S_RT}, 8")
    a(f"s_lshl_b32 s55, s{S_WV}, 6")
    a("s_add_u32 s54, s54, s55")
    a("v_add_u32 v4, s54, v4")
    a("v_lshlrev_b32 v4, 11, v4")
    a(f"v_lshl_add_u32 v{VDX}, v3, 4, v4")
    for ii in range(1, 4):
        a(f"v_add_u32 v{VDX+ii}, {ii*32768}, v{VDX}")
    for ii in range(4):
        a(f"s_lshl_b32 s{S_XSLOT[ii]}, s{S_WV}, 12")
        a(f"s_add_u32 s{S_XSLOT[ii]}, s{S_XSLOT[ii]}, {ii*1024}")
    a(f"s_lshl_b32 s54, s{S_WV}, 2")
    a(f"s_mul_i32 s55, s{S_WV}, 3")
    a("s_add_u32 s55, s55, 2")
    a(f"s_cmp_lt_u32 s{S_WV}, 2")
    a("s_cselect_b32 s54, s54, s55")
    a(f"s_mul_i32 s58, s{S_CT}, 224")
    a(f"s_and_b32 s59, s{S_CT}, 1")
    a("s_lshl_b32 s60, s59, 5")
    a("s_add_u32 s60, s60, s58")
    a("s_xor_b32 s59, s59, 1")
    a("s_mul_i32 s61, s59, 192")
    a("s_add_u32 s61, s61, s58")
    a("v_lshrrev_b32 v3, 4, v2")
    a("v_bfe_u32 v4, v2, 2, 2")
    a("v_and_b32 v5, 3, v2")
    for i in range(4):
        a(f"s_add_u32 s55, s54, {i}")
        a("s_cmp_ge_u32 s55, 7")
        a(f"s_cselect_b32 s{S_WSRD[i]}, s52, s50")
        a(f"s_cselect_b32 s{S_WSRD[i]+1}, s53, s51")
        a("s_cselect_b32 s56, 7, 0")
        a(f"s_mov_b32 s{S_WSRD[i]+2}, {D*F*2}")
        a(f"s_mov_b32 s{S_WSRD[i]+3}, 0x00020000")
        a("s_sub_u32 s56, s55, s56")
        a(f"s_lshl_b32 s{S_SLOT[i]}, s55, 10")
        a(f"s_add_u32 s{S_SLOT[i]}, s{S_SLOT[i]}, {XB}")
        a("s_lshl_b32 s57, s56, 2")
        a("v_add_u32 v6, s57, v3")
        a("v_mul_u32_u24 v7, 86, v6")
        a("v_lshrrev_b32 v7, 8, v7")
        a("v_mul_u32_u24 v20, 3, v7")
        a("v_sub_u32 v6, v6, v20")
        a("v_and_b32 v20, 2, v7")
        a("v_xor_b32 v20, v20, v5")
        a("v_lshlrev_b32 v20, 4, v20")
        a("v_lshl_add_u32 v20, v6, 6, v20")
        a("v_lshl_add_u32 v7, v7, 2, v4")
        a("v_mul_u32_u24 v7, 0x1c00, v7")
        a("v_add3_u32 v21, v7, v20, s60")
        a("v_and_b32 v6, 2, v3")
        a("v_lshlrev_b32 v6, 1, v6")
        a("v_and_b32 v7, 1, v3")
        a("v_add_u32 v6, v6, v7")
        a("v_and_b32 v7, 2, v5")
        a("v_add_u32 v6, v6, v7")
        a("v_lshl_add_u32 v6, v6, 2, v4")
        a("v_mul_u32_u24 v6, 0x1c00, v6")
        a("v_and_b32 v7, 1, v5")
        a("v_lshlrev_b32 v7, 4, v7")
        a("v_add3_u32 v22, v6, v7, s61")
        a("s_cmp_eq_u32 s56, 6")
        a("s_cselect_b64 vcc, -1, 0")
        a(f"v_cndmask_b32 v{VDW+i}, v21, v22, vcc")
    a("v_lshrrev_b32 v3, 4, v2")
    a("v_bfe_u32 v4, v2, 2, 2")
    a("v_and_b32 v5, 3, v2")
    a("v_lshlrev_b32 v6, 6, v4")
    a("v_lshl_add_u32 v6, v5, 3, v6")
    a("v_and_b32 v7, 1, v3")
    a("v_mul_u32_u24 v20, 1536, v3")
    a("v_add_u32 v20, v20, v6")
    a(f"v_lshl_add_u32 v{VA0}, v7, 5, v20")
    a("v_xor_b32 v21, 1, v7")
    a(f"v_lshl_add_u32 v{VA1}, v21, 5, v20")
    a("v_lshrrev_b32 v21, 1, v3")
    a("v_lshlrev_b32 v21, 9, v21")
    a("v_add_u32 v21, v21, v6")
    a(f"v_lshl_add_u32 v{VAS}, v7, 5, v21")
    a("v_lshrrev_b32 v6, 2, v2")
    a("v_sub_u32 v6, 0, v6")
    a("v_xor_b32 v6, v6, v3")
    a("v_and_b32 v6, 3, v6")
    a("v_and_b32 v7, 15, v2")
    a(f"s_lshl_b32 s54, s{S_WV}, 6")
    a("v_add_u32 v7, s54, v7")
    a("v_lshlrev_b32 v7, 6, v7")
    a(f"v_lshl_add_u32 v{VB}, v6, 4, v7")
    for i in range(112):
        a(f"v_mov_b32 v{GA+i}, 0")
    for i in range(112):
        a(f"v_accvgpr_write_b32 a{i}, 0")
    a(f"s_mov_b32 s{S_XO}, 0")
    a(f"s_mov_b32 s{S_WO}, 0")
    a(f"s_mov_b32 s{S_DM}, 0")
    a(f"s_mov_b32 s{S_RD}, 0")
    a(f"s_cmp_lt_u32 s{S_WV}, 2")
    a(f"s_cbranch_scc0 {name}_pathB")

    order = []
    for l in range(7):
        order.append((0, l)); order.append((1, l))
    def dma(idx, tag):
        if idx < 4:
            a(f"s_add_u32 m0, s{S_DM}, s{S_XSLOT[idx]}")
            a("s_nop 0")
            a.vmem(f"buffer_load_dwordx4 v{VDX+idx}, s[{S_XSRD}:{S_XSRD+3}], s{S_XO} offen lds", tag=tag)
        else:
            i = idx - 4
            a(f"s_add_u32 m0, s{S_DM}, s{S_SLOT[i]}")
            a("s_nop 0")
            a.vmem(f"buffer_load_dwordx4 v{VDW+i}, s[{S_WSRD[i]}:{S_WSRD[i]+3}], s{S_WO} offen lds", tag=tag)
    def dma_adv():
        a(f"s_add_u32 s{S_XO}, s{S_XO}, 64")
        a(f"s_add_u32 s{S_WO}, s{S_WO}, {32*7168}")
        a(f"s_add_u32 s{S_DM}, s{S_DM}, {STG}")
        a(f"s_cmp_eq_u32 s{S_DM}, {STG*NS}")
        a(f"s_cselect_b32 s{S_DM}, 0, s{S_DM}")
    def rd_adv():
        a(f"s_add_u32 s{S_DELTA}, s{S_RD}, {STG}")
        a(f"s_cmp_eq_u32 s{S_DELTA}, {STG*NS}")
        a(f"s_cselect_b32 s62, 0, s{S_DELTA}")
        a(f"s_sub_u32 s{S_DELTA}, s62, s{S_RD}")
        a(f"s_mov_b32 s{S_RD}, s62")
        for v in (VA0, VA1, VAS, VB):
            a(f"v_add_u32 v{v}, s{S_DELTA}, v{v}")
    def rd_a(ai, tag):
        m, l = order[ai]
        Wm = XB + m*WB
        for hf in range(2):
            if l < 6:
                base = VA0 if (l & 1) == 0 else VA1
                imm = Wm + (hf*3 + (l >> 1))*256
            else:
                base = VAS
                imm = Wm + 6144 + hf*256
            a.lds(f"ds_read_b64_tr_b16 v[{AF+4*ai+2*hf}:{AF+4*ai+2*hf+1}], v{base} offset:{imm}", tag=tag)
    def rd_b(bs, bt, tag):
        r = BF + 16*bs + 4*bt
        a.lds(f"ds_read_b128 v[{r}:{r+3}], v{VB} offset:{bt*1024}", tag=tag)
    def acc(m, l, bt):
        i = (l*4 + bt)*4
        return f"v[{GA+i}:{GA+i+3}]" if m == 0 else f"a[{i}:{i+3}]"

    def path(nslots, lbl):
        nd = 4 + nslots
        dg = dma_groups or [0, 1, 2, 3, 4, 5, 6, 7]
        dg = dg[:nd]
        for st in range(NS - 1):
            for i in range(nd):
                dma(i, ("d", st))
            dma_adv()
        a.wait_vm(("d", 0))
        a("s_barrier")
        for ai in range(PD):
            rd_a(ai, ("a", 0, ai))
            if ai < 4:
                rd_b(0, ai, ("b", 0, ai))
        if stamp:
            a("s_memtime s[68:69]")
        entry_l = None
        a(f"s_mov_b32 s{S_CNT}, 16")
        a.label(f"{lbl}_loop")
        a.vm = [("d", k) for k in (1, 2, 3) for _ in range(nd)]
        entry_l = list(a.lgkm); entry_v = list(a.vm)
        for ph in range(2):
            a.wait_vm(("d", ph + 1))
            a("s_barrier")
            di = 0
            for g in range(14):
                m, l = order[g]
                tags = [("a", ph, g)]
                if g == 0:
                    tags += [("b", ph, bt) for bt in range(4)]
                a.wait_lgkm(*tags)
                for bt in range(4):
                    r = BF + 16*ph + 4*bt
                    a(f"v_mfma_f32_16x16x32_bf16 {acc(m,l,bt)}, v[{AF+4*g}:{AF+4*g+3}], v[{r}:{r+3}], {acc(m,l,bt)}")
                    if bt == 0:
                        ga = g + PD
                        if no_lds:
                            a.lgkm = []
                        elif ga < 14:
                            rd_a(ga, ("a", ph, ga))
                        else:
                            rd_a(ga - 14, ("a", 1 - ph, ga - 14))
                    if bt == 1 and not no_lds:
                        gb = g - (14 - PD)
                        if 0 <= gb < 4:
                            rd_b(1 - ph, gb, ("b", 1 - ph, gb))
                    if bt == 2:
                        while di < nd and dg[di] == g:
                            if not no_dma:
                                dma(di, ("d", ph + 4))
                            di += 1
                            if di == nd:
                                dma_adv()
                    if bt == 3 and g == 14 - PD - 1:
                        rd_adv()
            assert di == nd
        if not (no_dma or no_lds):
            assert a.lgkm == entry_l, (a.lgkm, entry_l)
            assert [(t, k - 2) for (t, k) in a.vm] == entry_v, (a.vm, entry_v)
        a(f"s_sub_u32 s{S_CNT}, s{S_CNT}, 1")
        a(f"s_cmp_lg_u32 s{S_CNT}, 0")
        a(f"s_cbranch_scc1 {lbl}_loop")
        a.lgkm = []; a.vm = []

    path(4, f"{name}_A")
    a(f"s_branch {name}_epi")
    a.label(f"{name}_pathB")
    path(3, f"{name}_B")
    a.label(f"{name}_epi")
    if stamp:
        a("s_memtime s[70:71]")
    a("s_waitcnt vmcnt(0) lgkmcnt(0)")
    a("s_nop 7")
    a("s_nop 7")
    a(f"s_lshl_b32 s54, s{S_RT}, 4")
    a(f"s_lshl_b32 s55, s{S_WV}, 2")
    a("s_add_u32 s54, s54, s55")
    a("s_mul_i32 s54, s54, 112")
    a(f"s_mul_i32 s58, s{S_CT}, 224")
    a(f"s_and_b32 s59, s{S_CT}, 1")
    a("s_lshl_b32 s60, s59, 5")
    a("s_add_u32 s60, s60, s58")
    a("s_lshr_b32 s60, s60, 6")
    a("s_xor_b32 s59, s59, 1")
    a("s_mul_i32 s61, s59, 192")
    a("s_add_u32 s61, s61, s58")
    a("s_lshr_b32 s55, s61, 6")
    a("s_bfe_u32 s61, s61, 0x10005")
    a("s_lshl_b32 s61, s61, 3")
    a("s_add_u32 s60, s60, s54")
    a("s_lshl_b32 s60, s60, 10")
    a("s_add_u32 s55, s55, s54")
    a("s_lshl_b32 s55, s55, 10")
    a("s_add_u32 s55, s55, s61")
    a("v_lshlrev_b32 v3, 4, v2")
    a("v_add_u32 v4, s55, v3")
    a("v_add_u32 v3, s60, v3")
    T0 = 32
    def hcalc(l, bt, T):
        G = GA + (l*4 + bt)*4
        U = (l*4 + bt)*4
        for r in range(4):
            a(f"v_accvgpr_read_b32 v{T+4+r}, a{U+r}")
        for r in range(4):
            a(f"v_mul_f32 v{T+r}, s{S_NEGL2E}, v{G+r}")
        for r in range(4):
            a(f"v_exp_f32 v{T+r}, v{T+r}")
        for r in range(4):
            a(f"v_mul_f32 v{T+4+r}, v{T+4+r}, v{G+r}")
        for r in range(4):
            a(f"v_add_f32 v{T+r}, 1.0, v{T+r}")
        for r in range(4):
            a(f"v_rcp_f32 v{T+r}, v{T+r}")
        a("s_nop 0")
        for r in range(4):
            a(f"v_mul_f32 v{T+4+r}, v{T+4+r}, v{T+r}")
    for bt in range(4):
        for p in range(3):
            T = T0 + ((bt*3 + p) % 2) * 32
            hcalc(2*p, bt, T)
            a(f"v_cvt_pk_bf16_f32 v{T+8}, v{T+4}, v{T+5}")
            a(f"v_cvt_pk_bf16_f32 v{T+9}, v{T+6}, v{T+7}")
            hcalc(2*p+1, bt, T+16)
            a(f"v_cvt_pk_bf16_f32 v{T+10}, v{T+20}, v{T+21}")
            a(f"v_cvt_pk_bf16_f32 v{T+11}, v{T+22}, v{T+23}")
            a(f"buffer_store_dwordx4 v[{T+8}:{T+11}], v3, s[{S_HSRD}:{S_HSRD+3}], 0 offen offset:{p*1024}")
        T = T0 + 64
        hcalc(6, bt, T)
        a(f"v_cvt_pk_bf16_f32 v{T+8}, v{T+4}, v{T+5}")
        a(f"v_cvt_pk_bf16_f32 v{T+9}, v{T+6}, v{T+7}")
        a(f"buffer_store_dwordx2 v[{T+8}:{T+9}], v4, s[{S_HSRD}:{S_HSRD+3}], 0 offen")
        if bt < 3:
            a(f"v_add_u32 v3, {112*1024}, v3")
            a(f"v_add_u32 v4, {112*1024}, v4")
    if stamp:
        a("s_waitcnt vmcnt(0)")
        a("s_memtime s[72:73]")
        a("s_memrealtime s[74:75]")
        a("s_waitcnt lgkmcnt(0)")
        stamp_store(a, S_WV)
    a.label(f"{name}_end")
    a("s_endpgm")
    return a.text() + kernel_desc(name, 240 + 112, 96, accum=240)
```

```python
from asmgen import *
from gen_common import *

STG2 = 16384
NS2 = 4
LDS2_BYTES = STG2 * NS2

def gen_gemm2(name="gemm2_kernel", PH=8, stamp=False, nwg=256):
    a = Asm()
    a.raw(kernel_header(name))
    HF = 64
    AF = 32
    ACC = 128
    VH0, VH1 = 8, 9
    VA = [10, 11, 12, 13]
    VD = 14
    S_HSRD = 8; S_WSRD = 12; S_OSRD = 16; S_XSRD = 20; S_NSRD = 24; S_YSRD = 28
    S_WV = 32; S_HO = 33; S_WO = 34; S_CNT = 35; S_RT = 36; S_CT = 37; S_DM = 38; S_SLOT = 39
    a(f"s_cmp_ge_u32 s2, {nwg}")
    a(f"s_cbranch_scc1 {name}_end")
    if stamp:
        a("s_memtime s[64:65]")
        a("s_memrealtime s[66:67]")
    a(f"s_load_dwordx2 s[4:5], s[0:1], {KA_WS}")
    a(f"s_load_dwordx2 s[50:51], s[0:1], {KA_W2}")
    a(f"s_load_dwordx2 s[52:53], s[0:1], {KA_OUT}")
    a(f"s_load_dwordx2 s[54:55], s[0:1], {KA_Q}")
    a("v_lshrrev_b32 v1, 6, v0")
    a("v_and_b32 v2, 63, v0")
    a("s_nop 0")
    a(f"v_readfirstlane_b32 s{S_WV}, v1")
    a("s_and_b32 s56, s2, 7")
    a("s_lshr_b32 s57, s2, 3")
    a("s_and_b32 s58, s56, 3")
    a("s_lshl_b32 s58, s58, 2")
    a("s_and_b32 s59, s57, 3")
    a(f"s_add_u32 s{S_RT}, s58, s59")
    a("s_lshr_b32 s58, s56, 2")
    a("s_lshl_b32 s58, s58, 3")
    a("s_lshr_b32 s59, s57, 2")
    a(f"s_add_u32 s{S_CT}, s58, s59")
    a("s_waitcnt lgkmcnt(0)")
    srd(a, S_HSRD, 4, S*F*2, add=WS_H)
    srd(a, S_WSRD, 50, F*D*2)
    srd(a, S_OSRD, 52, S*D*2)
    srd(a, S_XSRD, 54, S*D*2)
    srd(a, S_NSRD, 4, S*D*2, add=WS_XN)
    srd(a, S_YSRD, 4, S*D*2, add=WS_YQ)
    a(f"s_lshl_b32 s56, s{S_RT}, 3")
    a(f"s_lshl_b32 s57, s{S_WV}, 1")
    a("s_add_u32 s56, s56, s57")
    a(f"s_mul_i32 s56, s56, {112*1024}")
    a("v_lshlrev_b32 v3, 4, v2")
    a(f"v_add_u32 v{VH0}, s56, v3")
    a(f"v_add_u32 v{VH1}, {112*1024}, v{VH0}")
    a("v_lshrrev_b32 v3, 3, v2")
    a("v_bfe_u32 v4, v2, 1, 2")
    a("v_bfe_u32 v5, v2, 4, 2")
    a("v_xor_b32 v4, v4, v5")
    a("v_and_b32 v5, 1, v2")
    a("v_lshl_add_u32 v4, v4, 1, v5")
    a("v_lshlrev_b32 v4, 4, v4")
    a(f"s_lshl_b32 s56, s{S_WV}, 5")
    a("v_add_u32 v3, s56, v3")
    a("v_lshlrev_b32 v3, 11, v3")
    a(f"s_lshl_b32 s56, s{S_CT}, 7")
    a(f"v_add3_u32 v{VD}, v3, v4, s56")
    for ii in range(1, 4):
        a(f"v_add_u32 v{VD+ii}, {ii*8*2048}, v{VD}")
    a(f"s_lshl_b32 s{S_SLOT}, s{S_WV}, 12")
    a("v_lshrrev_b32 v3, 4, v2")
    a("v_bfe_u32 v4, v2, 2, 2")
    a("v_and_b32 v5, 3, v2")
    a("v_lshl_add_u32 v3, v3, 2, v4")
    a("v_bfe_u32 v4, v3, 1, 2")
    a("v_lshlrev_b32 v3, 7, v3")
    a("v_lshl_add_u32 v3, v5, 3, v3")
    for dt in range(4):
        a(f"v_xor_b32 v5, {dt}, v4")
        a(f"v_lshl_add_u32 v{VA[dt]}, v5, 5, v3")
    for i in range(32):
        a(f"v_mov_b32 v{ACC+i}, 0")
    a(f"s_mov_b32 s{S_HO}, 0")
    a(f"s_mov_b32 s{S_WO}, 0")
    a(f"s_mov_b32 s{S_DM}, 0")

    def dma(ii, tag):
        a(f"s_add_u32 m0, s{S_DM}, s{S_SLOT}")
        if ii:
            a(f"s_add_u32 m0, m0, {ii*1024}")
        else:
            a("s_nop 0")
        a("s_nop 0")
        a.vmem(f"buffer_load_dwordx4 v{VD+ii}, s[{S_WSRD}:{S_WSRD+3}], s{S_WO} offen lds", tag=tag)
    def dma_adv():
        a(f"s_add_u32 s{S_WO}, s{S_WO}, {128*2048}")
        a(f"s_add_u32 s{S_DM}, s{S_DM}, {STG2}")
        a(f"s_and_b32 s{S_DM}, s{S_DM}, {STG2*NS2-1}")
    def ld_h(slot, tag):
        for bt in range(2):
            r = HF + slot*8 + bt*4
            a.vmem(f"buffer_load_dwordx4 v[{r}:{r+3}], v{VH0+bt}, s[{S_HSRD}:{S_HSRD+3}], s{S_HO} offen", tag=tag)
        a(f"s_add_u32 s{S_HO}, s{S_HO}, 1024")
    def rd_a(aset, pos, uu, dt, tag):
        for hf in range(2):
            imm = pos*STG2 + (32*uu + 16*hf)*128
            r = AF + aset*16 + dt*4 + 2*hf
            assert imm < 65536
            a.lds(f"ds_read_b64_tr_b16 v[{r}:{r+1}], v{VA[dt]} offset:{imm}", tag=tag)

    for ii in range(4):
        dma(ii, ("d", 0))
    dma_adv()
    for sl in range(PH):
        dma(sl % 4, ("d", 1 + sl // 4))
        if sl % 4 == 3:
            dma_adv()
        ld_h(sl, ("h", sl))
    a.wait_vm(("d", 0))
    a("s_barrier")
    for dt in range(4):
        rd_a(0, 0, 0, dt, ("a", 0, dt))
    if stamp:
        a("s_memtime s[68:69]")
    a(f"s_mov_b32 s{S_CNT}, 7")
    a.label(f"{name}_loop")
    entry_l = list(a.lgkm); entry_v = list(a.vm)
    step = 0
    for pos in range(NS2):
        nxt = (pos + 1) % NS2
        a.wait_vm(("d", nxt))
        a("s_barrier")
        for uu in range(4):
            aset = step % 2
            slot = step % PH
            npos, nuu = (pos, uu + 1) if uu < 3 else (nxt, 0)
            a.wait_vm(("h", slot))
            for dt in range(4):
                a.wait_lgkm(("a", aset, dt))
                for bt in range(2):
                    r = HF + slot*8 + bt*4
                    c = ACC + (dt*2 + bt)*4
                    a(f"v_mfma_f32_16x16x32_bf16 v[{c}:{c+3}], v[{AF+aset*16+dt*4}:{AF+aset*16+dt*4+3}], v[{r}:{r+3}], v[{c}:{c+3}]")
                    if bt == 0:
                        rd_a(1 - aset, npos, nuu, dt, ("a", 1 - aset, dt))
                if dt == 1:
                    dma(uu, ("d", (pos + 3) % NS2))
                    if uu == 3:
                        dma_adv()
            ld_h(slot, ("h", slot))
            step += 1
    assert a.lgkm == entry_l, (a.lgkm, entry_l)
    assert a.vm == entry_v, (a.vm, entry_v)
    a(f"s_sub_u32 s{S_CNT}, s{S_CNT}, 1")
    a(f"s_cmp_lg_u32 s{S_CNT}, 0")
    a(f"s_cbranch_scc1 {name}_loop")
    a.lgkm = []; a.vm = []
    if stamp:
        a("s_memtime s[70:71]")
    a("v_lshrrev_b32 v3, 4, v2")
    a("v_and_b32 v4, 1, v3")
    a("v_lshlrev_b32 v4, 4, v4")
    a("v_lshrrev_b32 v5, 1, v3")
    a("v_lshl_add_u32 v4, v5, 3, v4")
    a(f"s_lshl_b32 s56, s{S_CT}, 6")
    a("v_add_u32 v4, s56, v4")
    a(f"s_lshl_b32 s56, s{S_RT}, 7")
    a(f"s_lshl_b32 s57, s{S_WV}, 5")
    a("s_add_u32 s56, s56, s57")
    a("v_and_b32 v5, 15, v2")
    a("v_add_u32 v5, s56, v5")
    a("v_lshlrev_b32 v6, 11, v5")
    a("v_lshl_add_u32 v6, v4, 1, v6")
    a("v_lshlrev_b32 v7, 12, v4")
    a("v_lshl_add_u32 v7, v5, 3, v7")
    a("s_waitcnt vmcnt(0) lgkmcnt(0)")
    LX = 32
    k = 0
    for bt in range(2):
        for dp in range(2):
            r = LX + k*12
            a(f"v_add_u32 v18, {bt*16*2048 + dp*64}, v6")
            a(f"v_add_u32 v19, {bt*16*8 + dp*8*16384}, v7")
            a(f"v_add_u32 v20, 16384, v19")
            a.vmem(f"buffer_load_dwordx4 v[{r}:{r+3}], v18, s[{S_XSRD}:{S_XSRD+3}], 0 offen", tag=("e", k))
            a.vmem(f"buffer_load_dwordx4 v[{r+4}:{r+7}], v18, s[{S_NSRD}:{S_NSRD+3}], 0 offen", tag=("e", k))
            a.vmem(f"buffer_load_dwordx2 v[{r+8}:{r+9}], v19, s[{S_YSRD}:{S_YSRD+3}], 0 offen", tag=("e", k))
            a.vmem(f"buffer_load_dwordx2 v[{r+10}:{r+11}], v20, s[{S_YSRD}:{S_YSRD+3}], 0 offen", tag=("e", k))
            k += 1
    a("s_nop 7")
    k = 0
    P = 96
    for bt in range(2):
        for dp in range(2):
            cX = ACC + ((2*dp)*2 + bt)*4
            cY = ACC + ((2*dp+1)*2 + bt)*4
            a(f"v_cvt_pk_bf16_f32 v{P}, v{cX}, v{cX+1}")
            a(f"v_cvt_pk_bf16_f32 v{P+1}, v{cX+2}, v{cX+3}")
            a(f"v_cvt_pk_bf16_f32 v{P+2}, v{cY}, v{cY+1}")
            a(f"v_cvt_pk_bf16_f32 v{P+3}, v{cY+2}, v{cY+3}")
            a("s_nop 1")
            a(f"v_permlane16_swap_b32 v{P}, v{P+2}")
            a(f"v_permlane16_swap_b32 v{P+1}, v{P+3}")
            r = LX + k*12
            a.wait_vm(("e", k))
            for w in range(4):
                xr, nr, yr, br = r + w, r + 4 + w, r + 8 + w, P + w
                T = P + 8
                for half in range(2):
                    def unp(dst, src):
                        if half == 0:
                            a(f"v_lshlrev_b32 v{dst}, 16, v{src}")
                        else:
                            a(f"v_and_b32 v{dst}, 0xffff0000, v{src}")
                    unp(T + 0 + 4*half, nr); unp(T + 1 + 4*half, yr); unp(T + 2 + 4*half, xr); unp(T + 3 + 4*half, br)
                a(f"v_mul_f32 v{T}, v{T}, v{T+1}")
                a(f"v_mul_f32 v{T+4}, v{T+4}, v{T+5}")
                a(f"v_cvt_pk_bf16_f32 v{T}, v{T}, v{T+4}")
                a(f"v_and_b32 v{T+4}, 0xffff0000, v{T}")
                a(f"v_lshlrev_b32 v{T}, 16, v{T}")
                a(f"v_add_f32 v{T}, v{T}, v{T+2}")
                a(f"v_add_f32 v{T+4}, v{T+4}, v{T+6}")
                a(f"v_cvt_pk_bf16_f32 v{T}, v{T}, v{T+4}")
                a(f"v_and_b32 v{T+4}, 0xffff0000, v{T}")
                a(f"v_lshlrev_b32 v{T}, 16, v{T}")
                a(f"v_add_f32 v{T}, v{T}, v{T+3}")
                a(f"v_add_f32 v{T+4}, v{T+4}, v{T+7}")
                a(f"v_cvt_pk_bf16_f32 v{P+4+w}, v{T}, v{T+4}")
            a(f"v_add_u32 v18, {bt*16*2048 + dp*64}, v6")
            a(f"buffer_store_dwordx4 v[{P+4}:{P+7}], v18, s[{S_OSRD}:{S_OSRD+3}], 0 offen")
            a("s_nop 1")
            k += 1
    if stamp:
        a("s_waitcnt vmcnt(0)")
        a("s_memtime s[72:73]")
        a("s_memrealtime s[74:75]")
        a("s_waitcnt lgkmcnt(0)")
        stamp_store(a, S_WV)
    a.label(f"{name}_end")
    a("s_endpgm")
    return a.text() + kernel_desc(name, 160, 96)
```

```python
from asmgen import *
from gen_common import *

def gen_prep(name="prep_kernel"):
    a = Asm()
    a.raw(kernel_header(name))
    a("s_cmp_ge_u32 s2, 768")
    a("s_cbranch_scc1 L_prep_end")
    a("s_load_dwordx2 s[4:5], s[0:1], %d" % KA_Q)
    a("s_load_dwordx2 s[6:7], s[0:1], %d" % KA_WS)
    a("s_load_dwordx2 s[32:33], s[0:1], %d" % KA_K)
    a("s_load_dwordx2 s[34:35], s[0:1], %d" % KA_V)
    a("s_load_dwordx2 s[36:37], s[0:1], %d" % KA_SK)
    a("v_lshrrev_b32 v1, 6, v0")
    a("v_and_b32 v2, 63, v0")
    a("s_waitcnt lgkmcnt(0)")
    a("s_cmp_ge_u32 s2, 512")
    a("s_cbranch_scc1 L_prep_kv")
    srd(a, 8, 4, S*D*2)
    srd(a, 12, 6, S*D*2, add=WS_XN)
    srd(a, 16, 6, S*8, add=WS_STATS)
    a("s_lshl_b32 s3, s2, 2")
    a("v_add_u32 v3, s3, v1")
    a("v_lshlrev_b32 v4, 11, v3")
    a("v_lshl_add_u32 v4, v2, 4, v4")
    a("buffer_load_dwordx4 v[8:11], v4, s[8:11], 0 offen")
    a("buffer_load_dwordx4 v[12:15], v4, s[8:11], 0 offen offset:1024")
    a("s_waitcnt vmcnt(0)")
    for i in range(8):
        a(f"v_lshlrev_b32 v{16+2*i}, 16, v{8+i}")
        a(f"v_and_b32 v{17+2*i}, 0xffff0000, v{8+i}")
    a("v_add_f32 v32, v16, v17")
    for i in range(2, 16):
        a(f"v_add_f32 v32, v32, v{16+i}")
    wave_reduce_add(a, 32, 33)
    a("v_mul_f32 v32, 0x3a800000, v32")
    a("v_sub_f32 v34, v16, v32")
    a("v_mul_f32 v35, v34, v34")
    for i in range(1, 16):
        a(f"v_sub_f32 v34, v{16+i}, v32")
        a(f"v_fmac_f32 v35, v34, v34")
    wave_reduce_add(a, 35, 33)
    a("v_mul_f32 v35, 0x3a800000, v35")
    a("v_cvt_pk_bf16_f32 v36, v32, v35")
    a("v_lshlrev_b32 v32, 16, v36")
    a("v_and_b32 v35, 0xffff0000, v36")
    a("v_add_f32 v35, 0x3727c5ac, v35")
    a("v_cvt_pk_bf16_f32 v36, v35, v35")
    a("v_lshlrev_b32 v35, 16, v36")
    a("v_sqrt_f32 v35, v35")
    a("s_nop 0")
    a("v_cvt_pk_bf16_f32 v36, v35, v35")
    a("v_lshlrev_b32 v35, 16, v36")
    a("v_rcp_f32 v37, v35")
    a("s_nop 0")
    for i in range(8):
        a(f"v_sub_f32 v38, v{16+2*i}, v32")
        a(f"v_sub_f32 v39, v{17+2*i}, v32")
        a(f"v_cvt_pk_bf16_f32 v38, v38, v39")
        a(f"v_lshlrev_b32 v39, 16, v38")
        a(f"v_and_b32 v38, 0xffff0000, v38")
        a(f"v_mul_f32 v39, v39, v37")
        a(f"v_mul_f32 v38, v38, v37")
        a(f"v_cvt_pk_bf16_f32 v{8+i}, v39, v38")
    a("buffer_store_dwordx4 v[8:11], v4, s[12:15], 0 offen")
    a("buffer_store_dwordx4 v[12:15], v4, s[12:15], 0 offen offset:1024")
    a("v_mov_b32 v40, v32")
    a("v_mov_b32 v41, v37")
    a("v_lshlrev_b32 v5, 3, v3")
    a("v_cmp_eq_u32 vcc, 0, v2")
    a("s_and_saveexec_b64 s[20:21], vcc")
    a("buffer_store_dwordx2 v[40:41], v5, s[16:19], 0 offen")
    a("s_endpgm")
    a.label("L_prep_kv")
    srd(a, 8, 32, S*D*2)
    srd(a, 12, 34, S*D*2)
    srd(a, 16, 36, D*4*2)
    srd(a, 20, 6, D*S*2, add=WS_KVT)
    a("s_sub_u32 s3, s2, 512")
    a("s_and_b32 s24, s3, 7")
    a("s_lshr_b32 s25, s3, 3")
    a("s_lshl_b32 s24, s24, 7")
    a("s_lshl_b32 s25, s25, 6")
    a("v_lshl_add_u32 v3, v2, 1, s24")
    a("v_lshl_add_u32 v4, v1, 4, s25")
    a("v_lshlrev_b32 v5, 3, v3")
    a("buffer_load_dwordx4 v[8:11], v5, s[16:19], 0 offen")
    a("v_lshlrev_b32 v6, 11, v4")
    a("v_lshl_add_u32 v6, v3, 1, v6")
    for r in range(19):
        off = (r - 3) * 2048
        a(f"v_add_u32 v7, {off & 0xffffffff:#x}, v6")
        a(f"buffer_load_dword v{16+r}, v7, s[8:11], 0 offen")
    for r in range(16):
        a(f"v_add_u32 v7, {r*2048:#x}, v6")
        a(f"buffer_load_dword v{36+r}, v7, s[12:15], 0 offen")
    a("s_waitcnt vmcnt(0)")
    a("v_lshlrev_b32 v52, 16, v8");  a("v_and_b32 v53, 0xffff0000, v8")
    a("v_lshlrev_b32 v54, 16, v9");  a("v_and_b32 v55, 0xffff0000, v9")
    a("v_lshlrev_b32 v56, 16, v10"); a("v_and_b32 v57, 0xffff0000, v10")
    a("v_lshlrev_b32 v58, 16, v11"); a("v_and_b32 v59, 0xffff0000, v11")
    for r in range(19):
        a(f"v_lshlrev_b32 v{64+r}, 16, v{16+r}")
        a(f"v_and_b32 v{84+r}, 0xffff0000, v{16+r}")
    for i in range(16):
        for (kb, wb, ob, sh) in ((64, 52, 104, 'lo'), (84, 56, 120, 'hi')):
            a(f"v_mul_f32 v60, v{kb+i}, v{wb+3}")
            a(f"v_fmac_f32 v60, v{kb+i+1}, v{wb+2}")
            a(f"v_fmac_f32 v60, v{kb+i+2}, v{wb+1}")
            a(f"v_fmac_f32 v60, v{kb+i+3}, v{wb+0}")
            a(f"v_cvt_pk_bf16_f32 v60, v60, v60")
            a(f"v_lshlrev_b32 v60, 16, v60")
            if sh == 'lo':
                a(f"v_lshlrev_b32 v61, 16, v{36+i}")
            else:
                a(f"v_and_b32 v61, 0xffff0000, v{36+i}")
            a(f"v_mul_f32 v{ob+i}, v60, v61")
    for i in range(8):
        a(f"v_cvt_pk_bf16_f32 v{16+i}, v{104+15-2*i}, v{104+14-2*i}")
        a(f"v_cvt_pk_bf16_f32 v{24+i}, v{120+15-2*i}, v{120+14-2*i}")
    a("v_sub_u32 v7, 2032, v4")
    a("v_lshlrev_b32 v7, 1, v7")
    a("v_lshl_add_u32 v7, v3, 12, v7")
    a("buffer_store_dwordx4 v[16:19], v7, s[20:23], 0 offen")
    a("buffer_store_dwordx4 v[20:23], v7, s[20:23], 0 offen offset:16")
    a("v_add_u32 v7, 4096, v7")
    a("buffer_store_dwordx4 v[24:27], v7, s[20:23], 0 offen")
    a("buffer_store_dwordx4 v[28:31], v7, s[20:23], 0 offen offset:16")
    a.label("L_prep_end")
    a("s_endpgm")
    return a.text() + kernel_desc(name, 136, 48)
```

```python
import sys
from gen_common import *
import gen_prep, gen_gemm1b, gen_gemm2, gen_conv
ref = open('parallel_sum__ssm_conv_h3__glu_gated_swiglu__prompt.s.ref').read()
hdr = []
for line in ref.splitlines():
    if line.startswith(';') and '@launch' not in line and 'Override launch' not in line and 'grid=ceil' not in line:
        hdr.append(line)
    elif not line.startswith(';'):
        break
def make(launches, body):
    out = "\n".join(hdr) + "\n"
    for (k, g, b, l) in launches:
        out += f"; @launch kernel={k} grid=({g},1,1) block=({b},1,1) lds={l}\n"
    out += '.amdgcn_target "amdgcn-amd-amdhsa--gfx950"\n' + body
    return out
if __name__ == "__main__":
    launches = [("prep_kernel", gen_prep.PREP_GRID, 256, 0), ("gemm1_kernel", 256, 256, gen_gemm1b.LDS_BYTES), ("conv_kernel", 256, 256, gen_conv.CONV_LDS), ("gemm2_kernel", 256, 256, gen_gemm2.LDS2_BYTES)]
    body = gen_prep.gen_prep() + gen_gemm1b.gen_gemm1b() + gen_conv.gen_conv() + gen_gemm2.gen_gemm2()
    dst = sys.argv[1] if len(sys.argv) > 1 else 'parallel_sum__ssm_conv_h3__glu_gated_swiglu__prompt.s'
    open(dst, 'w').write(make(launches, body))
    print("wrote", dst)
```

```python
from asmgen import *
from gen_common import *

STG = 30720
XB = 16384
WB = 7168
NS = 5
LDS_BYTES = STG * NS

def gen_gemm1b(name="gemm1_kernel", PD=6, dma_groups=None, no_dma=False, no_lds=False, stamp=False, nwg=256, xsrc_ws=True, st_flags="", touch=True):
    a = Asm()
    a.raw(kernel_header(name))
    AF = 32
    BF = 88
    GA = 128
    VA0, VA1, VAS, VB = 8, 9, 10, 11
    VDX = 12
    VDW = 16
    S_XSRD = 8; S_WSRD = [12, 16, 20, 24]; S_HSRD = 28
    S_WV = 32; S_XO = 33; S_WO = 34; S_SLOT = [36, 37, 38, 39]; S_XSLOT = [40, 41, 42, 43]; S_CNT = 35
    S_RT = 44; S_CT = 45; S_NEGL2E = 46; S_RD = 47; S_DM = 48; S_DELTA = 49
    a(f"s_cmp_ge_u32 s2, {nwg}")
    a(f"s_cbranch_scc1 {name}_end")
    if stamp:
        a("s_memtime s[64:65]")
        a("s_memrealtime s[66:67]")
    a(f"s_load_dwordx2 s[4:5], s[0:1], {KA_WS}")
    a(f"s_load_dwordx2 s[50:51], s[0:1], {KA_W1}")
    a(f"s_load_dwordx2 s[52:53], s[0:1], {KA_W3}")
    a("v_lshrrev_b32 v1, 6, v0")
    a("v_and_b32 v2, 63, v0")
    a("s_nop 0")
    a(f"v_readfirstlane_b32 s{S_WV}, v1")
    a("s_and_b32 s54, s2, 7")
    a("s_lshr_b32 s55, s2, 3")
    a("s_and_b32 s56, s54, 1")
    a("s_lshl_b32 s56, s56, 2")
    a("s_and_b32 s57, s55, 3")
    a(f"s_add_u32 s{S_RT}, s56, s57")
    a("s_lshr_b32 s56, s54, 1")
    a("s_lshl_b32 s56, s56, 3")
    a("s_lshr_b32 s57, s55, 2")
    a(f"s_add_u32 s{S_CT}, s56, s57")
    a("s_waitcnt lgkmcnt(0)")
    srd(a, S_XSRD, 4, S*D*2, add=WS_XN)
    srd(a, S_HSRD, 4, S*F*2, add=WS_H)
    a(f"s_mov_b32 s{S_NEGL2E}, 0xbfb8aa3b")
    if touch:
        srd(a, 80, 50, D*F*2)
        srd(a, 84, 52, D*F*2)
        a(f"s_lshl_b32 s54, s2, 2")
        a(f"s_add_u32 s54, s54, s{S_WV}")
        a("s_lshl_b32 s54, s54, 9")
        a("v_lshlrev_b32 v23, 7, v2")
        a("v_add_u32 v23, s54, v23")
        a("v_mov_b32 v24, 0x80000000")
        a("v_cmp_gt_u32 vcc, 4, v2")
        a("s_nop 1")
        a("v_cndmask_b32 v23, v24, v23, vcc")
        a(f"s_mov_b32 s88, {192*7168}")
    a("v_lshrrev_b32 v3, 4, v2")
    a("v_sub_u32 v3, 0, v3")
    a("v_xor_b32 v3, v3, v2")
    a("v_and_b32 v3, 3, v3")
    a("v_lshrrev_b32 v4, 2, v2")
    a(f"s_lshl_b32 s54, s{S_RT}, 8")
    a(f"s_lshl_b32 s55, s{S_WV}, 6")
    a("s_add_u32 s54, s54, s55")
    a("v_add_u32 v4, s54, v4")
    a("v_lshlrev_b32 v4, 11, v4")
    a(f"v_lshl_add_u32 v{VDX}, v3, 4, v4")
    for ii in range(1, 4):
        a(f"v_add_u32 v{VDX+ii}, {ii*32768}, v{VDX}")
    for ii in range(4):
        a(f"s_lshl_b32 s{S_XSLOT[ii]}, s{S_WV}, 12")
        a(f"s_add_u32 s{S_XSLOT[ii]}, s{S_XSLOT[ii]}, {ii*1024}")
    a(f"s_lshl_b32 s54, s{S_WV}, 2")
    a(f"s_mul_i32 s55, s{S_WV}, 3")
    a("s_add_u32 s55, s55, 2")
    a(f"s_cmp_lt_u32 s{S_WV}, 2")
    a("s_cselect_b32 s54, s54, s55")
    a(f"s_mul_i32 s58, s{S_CT}, 224")
    a(f"s_and_b32 s59, s{S_CT}, 1")
    a("s_lshl_b32 s60, s59, 5")
    a("s_add_u32 s60, s60, s58")
    a("s_xor_b32 s59, s59, 1")
    a("s_mul_i32 s61, s59, 192")
    a("s_add_u32 s61, s61, s58")
    a("v_lshrrev_b32 v3, 4, v2")
    a("v_bfe_u32 v4, v2, 2, 2")
    a("v_and_b32 v5, 3, v2")
    for i in range(4):
        a(f"s_add_u32 s55, s54, {i}")
        a("s_cmp_ge_u32 s55, 7")
        a(f"s_cselect_b32 s{S_WSRD[i]}, s52, s50")
        a(f"s_cselect_b32 s{S_WSRD[i]+1}, s53, s51")
        a("s_cselect_b32 s56, 7, 0")
        a(f"s_mov_b32 s{S_WSRD[i]+2}, {D*F*2}")
        a(f"s_mov_b32 s{S_WSRD[i]+3}, 0x00020000")
        a("s_sub_u32 s56, s55, s56")
        a(f"s_lshl_b32 s{S_SLOT[i]}, s55, 10")
        a(f"s_add_u32 s{S_SLOT[i]}, s{S_SLOT[i]}, {XB}")
        a("s_lshl_b32 s57, s56, 2")
        a("v_add_u32 v6, s57, v3")
        a("v_mul_u32_u24 v7, 86, v6")
        a("v_lshrrev_b32 v7, 8, v7")
        a("v_mul_u32_u24 v20, 3, v7")
        a("v_sub_u32 v6, v6, v20")
        a("v_and_b32 v20, 2, v7")
        a("v_xor_b32 v20, v20, v5")
        a("v_lshlrev_b32 v20, 4, v20")
        a("v_lshl_add_u32 v20, v6, 6, v20")
        a("v_lshl_add_u32 v7, v7, 2, v4")
        a("v_mul_u32_u24 v7, 0x1c00, v7")
        a("v_add3_u32 v21, v7, v20, s60")
        a("v_and_b32 v6, 2, v3")
        a("v_lshlrev_b32 v6, 1, v6")
        a("v_and_b32 v7, 1, v3")
        a("v_add_u32 v6, v6, v7")
        a("v_and_b32 v7, 2, v5")
        a("v_add_u32 v6, v6, v7")
        a("v_lshl_add_u32 v6, v6, 2, v4")
        a("v_mul_u32_u24 v6, 0x1c00, v6")
        a("v_and_b32 v7, 1, v5")
        a("v_lshlrev_b32 v7, 4, v7")
        a("v_add3_u32 v22, v6, v7, s61")
        a("s_cmp_eq_u32 s56, 6")
        a("s_cselect_b64 vcc, -1, 0")
        a(f"v_cndmask_b32 v{VDW+i}, v21, v22, vcc")
    a("v_lshrrev_b32 v3, 4, v2")
    a("v_bfe_u32 v4, v2, 2, 2")
    a("v_and_b32 v5, 3, v2")
    a("v_lshlrev_b32 v6, 6, v4")
    a("v_lshl_add_u32 v6, v5, 3, v6")
    a("v_and_b32 v7, 1, v3")
    a("v_mul_u32_u24 v20, 1536, v3")
    a("v_add_u32 v20, v20, v6")
    a(f"v_lshl_add_u32 v{VA0}, v7, 5, v20")
    a("v_xor_b32 v21, 1, v7")
    a(f"v_lshl_add_u32 v{VA1}, v21, 5, v20")
    a("v_lshrrev_b32 v21, 1, v3")
    a("v_lshlrev_b32 v21, 9, v21")
    a("v_add_u32 v21, v21, v6")
    a(f"v_lshl_add_u32 v{VAS}, v7, 5, v21")
    a("v_lshrrev_b32 v6, 2, v2")
    a("v_sub_u32 v6, 0, v6")
    a("v_xor_b32 v6, v6, v3")
    a("v_and_b32 v6, 3, v6")
    a("v_and_b32 v7, 15, v2")
    a(f"s_lshl_b32 s54, s{S_WV}, 6")
    a("v_add_u32 v7, s54, v7")
    a("v_lshlrev_b32 v7, 6, v7")
    a(f"v_lshl_add_u32 v{VB}, v6, 4, v7")
    for i in range(112):
        a(f"v_mov_b32 v{GA+i}, 0")
    for i in range(112):
        a(f"v_accvgpr_write_b32 a{i}, 0")
    a(f"s_mov_b32 s{S_XO}, 0")
    a(f"s_mov_b32 s{S_WO}, 0")
    a(f"s_mov_b32 s{S_DM}, 0")
    a(f"s_mov_b32 s{S_RD}, 0")
    a(f"s_cmp_lt_u32 s{S_WV}, 2")
    a(f"s_cbranch_scc0 {name}_pathB")

    order = []
    for l in range(7):
        order.append((0, l)); order.append((1, l))
    def dma(idx, tag):
        if idx < 4:
            a(f"s_add_u32 m0, s{S_DM}, s{S_XSLOT[idx]}")
            a("s_nop 0")
            a.vmem(f"buffer_load_dwordx4 v{VDX+idx}, s[{S_XSRD}:{S_XSRD+3}], s{S_XO} offen lds", tag=tag)
        else:
            i = idx - 4
            a(f"s_add_u32 m0, s{S_DM}, s{S_SLOT[i]}")
            a("s_nop 0")
            a.vmem(f"buffer_load_dwordx4 v{VDW+i}, s[{S_WSRD[i]}:{S_WSRD[i]+3}], s{S_WO} offen lds", tag=tag)
    def dma_adv():
        a(f"s_add_u32 s{S_XO}, s{S_XO}, 64")
        a(f"s_add_u32 s{S_WO}, s{S_WO}, {32*7168}")
        a(f"s_add_u32 s{S_DM}, s{S_DM}, {STG}")
        a(f"s_cmp_eq_u32 s{S_DM}, {STG*NS}")
        a(f"s_cselect_b32 s{S_DM}, 0, s{S_DM}")
    def do_touch(par):
        if not touch:
            return
        a.vmem(f"buffer_load_dword v25, v23, s[{80 if par == 0 else 84}:{83 if par == 0 else 87}], s88 offen", tag=("t", 0))
        if par == 1:
            a(f"s_add_u32 s88, s88, {64*7168}")
    def rd_adv():
        a(f"s_add_u32 s{S_DELTA}, s{S_RD}, {STG}")
        a(f"s_cmp_eq_u32 s{S_DELTA}, {STG*NS}")
        a(f"s_cselect_b32 s62, 0, s{S_DELTA}")
        a(f"s_sub_u32 s{S_DELTA}, s62, s{S_RD}")
        a(f"s_mov_b32 s{S_RD}, s62")
        for v in (VA0, VA1, VAS, VB):
            a(f"v_add_u32 v{v}, s{S_DELTA}, v{v}")
    def rd_a(ai, tag):
        m, l = order[ai]
        Wm = XB + m*WB
        for hf in range(2):
            if l < 6:
                base = VA0 if (l & 1) == 0 else VA1
                imm = Wm + (hf*3 + (l >> 1))*256
            else:
                base = VAS
                imm = Wm + 6144 + hf*256
            a.lds(f"ds_read_b64_tr_b16 v[{AF+4*ai+2*hf}:{AF+4*ai+2*hf+1}], v{base} offset:{imm}", tag=tag)
    def rd_b(bs, bt, tag):
        r = BF + 16*bs + 4*bt
        a.lds(f"ds_read_b128 v[{r}:{r+3}], v{VB} offset:{bt*1024}", tag=tag)
    def acc(m, l, bt):
        i = (l*4 + bt)*4
        return f"v[{GA+i}:{GA+i+3}]" if m == 0 else f"a[{i}:{i+3}]"

    def path(nslots, lbl):
        nd = 4 + nslots
        dg = dma_groups or [0, 1, 2, 3, 4, 5, 6, 7]
        dg = dg[:nd]
        for st in range(NS - 1):
            for i in range(nd):
                dma(i, ("d", st))
            dma_adv()
            do_touch(st % 2)
        a.wait_vm(("d", 0))
        a("s_barrier")
        for ai in range(PD):
            rd_a(ai, ("a", 0, ai))
            if ai < 4:
                rd_b(0, ai, ("b", 0, ai))
        if stamp:
            a("s_memtime s[68:69]")
        entry_l = None
        a(f"s_mov_b32 s{S_CNT}, 16")
        a.label(f"{lbl}_loop")
        tt = [("t", 0)] if touch else []
        assert a.vm == tt + sum([[("d", k)]*nd + tt for k in (1, 2, 3)], []), a.vm
        entry_l = list(a.lgkm); entry_v = list(a.vm)
        for ph in range(2):
            a.wait_vm(("d", ph + 1))
            a("s_barrier")
            di = 0
            for g in range(14):
                m, l = order[g]
                tags = [("a", ph, g)]
                if g == 0:
                    tags += [("b", ph, bt) for bt in range(4)]
                a.wait_lgkm(*tags)
                for bt in range(4):
                    r = BF + 16*ph + 4*bt
                    a(f"v_mfma_f32_16x16x32_bf16 {acc(m,l,bt)}, v[{AF+4*g}:{AF+4*g+3}], v[{r}:{r+3}], {acc(m,l,bt)}")
                    if bt == 0:
                        ga = g + PD
                        if no_lds:
                            a.lgkm = []
                        elif ga < 14:
                            rd_a(ga, ("a", ph, ga))
                        else:
                            rd_a(ga - 14, ("a", 1 - ph, ga - 14))
                    if bt == 1 and not no_lds:
                        gb = g - (14 - PD)
                        if 0 <= gb < 4:
                            rd_b(1 - ph, gb, ("b", 1 - ph, gb))
                    if bt == 2:
                        while di < nd and dg[di] == g:
                            if not no_dma:
                                dma(di, ("d", ph + 4))
                            di += 1
                            if di == nd:
                                dma_adv()
                                if not no_dma:
                                    do_touch(ph)
                    if bt == 3 and g == 14 - PD - 1:
                        rd_adv()
            assert di == nd
        if not (no_dma or no_lds):
            assert a.lgkm == entry_l, (a.lgkm, entry_l)
            assert [(t, k - 2 if t == "d" else k) for (t, k) in a.vm] == entry_v, (a.vm, entry_v)
        a(f"s_sub_u32 s{S_CNT}, s{S_CNT}, 1")
        a(f"s_cmp_lg_u32 s{S_CNT}, 0")
        a(f"s_cbranch_scc1 {lbl}_loop")
        a.lgkm = []; a.vm = []

    path(4, f"{name}_A")
    a(f"s_branch {name}_epi")
    a.label(f"{name}_pathB")
    path(3, f"{name}_B")
    a.label(f"{name}_epi")
    if stamp:
        a("s_memtime s[70:71]")
    a("s_waitcnt vmcnt(0) lgkmcnt(0)")
    if touch:
        a(f"s_load_dwordx2 s[54:55], s[0:1], {KA_W2}")
        a(f"s_load_dwordx2 s[56:57], s[0:1], {KA_SSMK}")
        a(f"s_lshl_b32 s58, s2, 2")
        a(f"s_add_u32 s58, s58, s{S_WV}")
        a("s_mul_i32 s59, s58, 56")
        a("v_add_u32 v23, s59, v2")
        a("v_lshlrev_b32 v23, 7, v23")
        a("v_mov_b32 v24, 0x80000000")
        a("v_cmp_gt_u32 vcc, 56, v2")
        a("s_waitcnt lgkmcnt(0)")
        a("v_cndmask_b32 v23, v24, v23, vcc")
        srd(a, 80, 54, F*D*2)
        srd(a, 84, 56, D*S*2)
        a("buffer_load_dword v25, v23, s[80:83], 0 offen")
        a("s_lshl_b32 s59, s58, 5")
        a("v_add_u32 v23, s59, v2")
        a("v_lshlrev_b32 v23, 7, v23")
        a("v_cmp_gt_u32 vcc, 32, v2")
        a("s_nop 1")
        a("v_cndmask_b32 v23, v24, v23, vcc")
        a("buffer_load_dword v26, v23, s[84:87], 0 offen")
    a("s_nop 7")
    a("s_nop 7")
    a(f"s_lshl_b32 s54, s{S_RT}, 4")
    a(f"s_lshl_b32 s55, s{S_WV}, 2")
    a("s_add_u32 s54, s54, s55")
    a("s_mul_i32 s54, s54, 112")
    a(f"s_mul_i32 s58, s{S_CT}, 224")
    a(f"s_and_b32 s59, s{S_CT}, 1")
    a("s_lshl_b32 s60, s59, 5")
    a("s_add_u32 s60, s60, s58")
    a("s_lshr_b32 s60, s60, 6")
    a("s_xor_b32 s59, s59, 1")
    a("s_mul_i32 s61, s59, 192")
    a("s_add_u32 s61, s61, s58")
    a("s_lshr_b32 s55, s61, 6")
    a("s_bfe_u32 s61, s61, 0x10005")
    a("s_lshl_b32 s61, s61, 3")
    a("s_add_u32 s60, s60, s54")
    a("s_lshl_b32 s60, s60, 10")
    a("s_add_u32 s55, s55, s54")
    a("s_lshl_b32 s55, s55, 10")
    a("s_add_u32 s55, s55, s61")
    a("v_lshlrev_b32 v3, 4, v2")
    a("v_add_u32 v4, s55, v3")
    a("v_add_u32 v3, s60, v3")
    T0 = 32
    def hcalc(l, bt, T):
        G = GA + (l*4 + bt)*4
        U = (l*4 + bt)*4
        for r in range(4):
            a(f"v_accvgpr_read_b32 v{T+4+r}, a{U+r}")
        for r in range(4):
            a(f"v_mul_f32 v{T+r}, s{S_NEGL2E}, v{G+r}")
        for r in range(4):
            a(f"v_exp_f32 v{T+r}, v{T+r}")
        for r in range(4):
            a(f"v_mul_f32 v{T+4+r}, v{T+4+r}, v{G+r}")
        for r in range(4):
            a(f"v_add_f32 v{T+r}, 1.0, v{T+r}")
        for r in range(4):
            a(f"v_rcp_f32 v{T+r}, v{T+r}")
        a("s_nop 0")
        for r in range(4):
            a(f"v_mul_f32 v{T+4+r}, v{T+4+r}, v{T+r}")
    for bt in range(4):
        for p in range(3):
            T = T0 + ((bt*3 + p) % 2) * 32
            hcalc(2*p, bt, T)
            a(f"v_cvt_pk_bf16_f32 v{T+8}, v{T+4}, v{T+5}")
            a(f"v_cvt_pk_bf16_f32 v{T+9}, v{T+6}, v{T+7}")
            hcalc(2*p+1, bt, T+16)
            a(f"v_cvt_pk_bf16_f32 v{T+10}, v{T+20}, v{T+21}")
            a(f"v_cvt_pk_bf16_f32 v{T+11}, v{T+22}, v{T+23}")
            a(f"buffer_store_dwordx4 v[{T+8}:{T+11}], v3, s[{S_HSRD}:{S_HSRD+3}], 0 offen offset:{p*1024}{st_flags}")
        T = T0 + 64
        hcalc(6, bt, T)
        a(f"v_cvt_pk_bf16_f32 v{T+8}, v{T+4}, v{T+5}")
        a(f"v_cvt_pk_bf16_f32 v{T+9}, v{T+6}, v{T+7}")
        a(f"buffer_store_dwordx2 v[{T+8}:{T+9}], v4, s[{S_HSRD}:{S_HSRD+3}], 0 offen{st_flags}")
        if bt < 3:
            a(f"v_add_u32 v3, {112*1024}, v3")
            a(f"v_add_u32 v4, {112*1024}, v4")
    if stamp:
        a("s_waitcnt vmcnt(0)")
        a("s_memtime s[72:73]")
        a("s_memrealtime s[74:75]")
        a("s_waitcnt lgkmcnt(0)")
        stamp_store(a, S_WV)
    a.label(f"{name}_end")
    a("s_endpgm")
    return a.text() + kernel_desc(name, 240 + 112, 96, accum=240)
```

```python
from asmgen import *
from gen_common import *

NTOUCH = 140
PREP_GRID = 768 + NTOUCH
def gen_prep(name="prep_kernel"):
    a = Asm()
    a.raw(kernel_header(name))
    a(f"s_cmp_ge_u32 s2, {PREP_GRID}")
    a("s_cbranch_scc1 L_prep_end")
    a(f"s_cmp_lt_u32 s2, {NTOUCH}")
    a("s_cbranch_scc1 L_prep_touch")
    a(f"s_sub_u32 s2, s2, {NTOUCH}")
    a("s_load_dwordx2 s[4:5], s[0:1], %d" % KA_Q)
    a("s_load_dwordx2 s[6:7], s[0:1], %d" % KA_WS)
    a("s_load_dwordx2 s[32:33], s[0:1], %d" % KA_K)
    a("s_load_dwordx2 s[34:35], s[0:1], %d" % KA_V)
    a("s_load_dwordx2 s[36:37], s[0:1], %d" % KA_SK)
    a("v_lshrrev_b32 v1, 6, v0")
    a("v_and_b32 v2, 63, v0")
    a("s_waitcnt lgkmcnt(0)")
    a("s_cmp_ge_u32 s2, 512")
    a("s_cbranch_scc1 L_prep_kv")
    srd(a, 8, 4, S*D*2)
    srd(a, 12, 6, S*D*2, add=WS_XN)
    srd(a, 16, 6, S*8, add=WS_STATS)
    a("s_lshl_b32 s3, s2, 2")
    a("v_add_u32 v3, s3, v1")
    a("v_lshlrev_b32 v4, 11, v3")
    a("v_lshl_add_u32 v4, v2, 4, v4")
    a("buffer_load_dwordx4 v[8:11], v4, s[8:11], 0 offen")
    a("buffer_load_dwordx4 v[12:15], v4, s[8:11], 0 offen offset:1024")
    a("s_waitcnt vmcnt(0)")
    for i in range(8):
        a(f"v_lshlrev_b32 v{16+2*i}, 16, v{8+i}")
        a(f"v_and_b32 v{17+2*i}, 0xffff0000, v{8+i}")
    a("v_add_f32 v32, v16, v17")
    for i in range(2, 16):
        a(f"v_add_f32 v32, v32, v{16+i}")
    wave_reduce_add(a, 32, 33)
    a("v_mul_f32 v32, 0x3a800000, v32")
    a("v_sub_f32 v34, v16, v32")
    a("v_mul_f32 v35, v34, v34")
    for i in range(1, 16):
        a(f"v_sub_f32 v34, v{16+i}, v32")
        a(f"v_fmac_f32 v35, v34, v34")
    wave_reduce_add(a, 35, 33)
    a("v_mul_f32 v35, 0x3a800000, v35")
    a("v_cvt_pk_bf16_f32 v36, v32, v35")
    a("v_lshlrev_b32 v32, 16, v36")
    a("v_and_b32 v35, 0xffff0000, v36")
    a("v_add_f32 v35, 0x3727c5ac, v35")
    a("v_cvt_pk_bf16_f32 v36, v35, v35")
    a("v_lshlrev_b32 v35, 16, v36")
    a("v_sqrt_f32 v35, v35")
    a("s_nop 0")
    a("v_cvt_pk_bf16_f32 v36, v35, v35")
    a("v_lshlrev_b32 v35, 16, v36")
    a("v_rcp_f32 v37, v35")
    a("s_nop 0")
    for i in range(8):
        a(f"v_sub_f32 v38, v{16+2*i}, v32")
        a(f"v_sub_f32 v39, v{17+2*i}, v32")
        a(f"v_cvt_pk_bf16_f32 v38, v38, v39")
        a(f"v_lshlrev_b32 v39, 16, v38")
        a(f"v_and_b32 v38, 0xffff0000, v38")
        a(f"v_mul_f32 v39, v39, v37")
        a(f"v_mul_f32 v38, v38, v37")
        a(f"v_cvt_pk_bf16_f32 v{8+i}, v39, v38")
    a("buffer_store_dwordx4 v[8:11], v4, s[12:15], 0 offen")
    a("buffer_store_dwordx4 v[12:15], v4, s[12:15], 0 offen offset:1024")
    a("v_mov_b32 v40, v32")
    a("v_mov_b32 v41, v37")
    a("v_lshlrev_b32 v5, 3, v3")
    a("v_cmp_eq_u32 vcc, 0, v2")
    a("s_and_saveexec_b64 s[20:21], vcc")
    a("buffer_store_dwordx2 v[40:41], v5, s[16:19], 0 offen")
    a("s_endpgm")
    a.label("L_prep_kv")
    srd(a, 8, 32, S*D*2)
    srd(a, 12, 34, S*D*2)
    srd(a, 16, 36, D*4*2)
    srd(a, 20, 6, D*S*2, add=WS_KVT)
    a("s_sub_u32 s3, s2, 512")
    a("s_and_b32 s24, s3, 7")
    a("s_lshr_b32 s25, s3, 3")
    a("s_lshl_b32 s24, s24, 7")
    a("s_lshl_b32 s25, s25, 6")
    a("v_lshl_add_u32 v3, v2, 1, s24")
    a("v_lshl_add_u32 v4, v1, 4, s25")
    a("v_lshlrev_b32 v5, 3, v3")
    a("buffer_load_dwordx4 v[8:11], v5, s[16:19], 0 offen")
    a("v_lshlrev_b32 v6, 11, v4")
    a("v_lshl_add_u32 v6, v3, 1, v6")
    for r in range(19):
        off = (r - 3) * 2048
        a(f"v_add_u32 v7, {off & 0xffffffff:#x}, v6")
        a(f"buffer_load_dword v{16+r}, v7, s[8:11], 0 offen")
    for r in range(16):
        a(f"v_add_u32 v7, {r*2048:#x}, v6")
        a(f"buffer_load_dword v{36+r}, v7, s[12:15], 0 offen")
    a("s_waitcnt vmcnt(0)")
    a("v_lshlrev_b32 v52, 16, v8");  a("v_and_b32 v53, 0xffff0000, v8")
    a("v_lshlrev_b32 v54, 16, v9");  a("v_and_b32 v55, 0xffff0000, v9")
    a("v_lshlrev_b32 v56, 16, v10"); a("v_and_b32 v57, 0xffff0000, v10")
    a("v_lshlrev_b32 v58, 16, v11"); a("v_and_b32 v59, 0xffff0000, v11")
    for r in range(19):
        a(f"v_lshlrev_b32 v{64+r}, 16, v{16+r}")
        a(f"v_and_b32 v{84+r}, 0xffff0000, v{16+r}")
    for i in range(16):
        for (kb, wb, ob, sh) in ((64, 52, 104, 'lo'), (84, 56, 120, 'hi')):
            a(f"v_mul_f32 v60, v{kb+i}, v{wb+3}")
            a(f"v_fmac_f32 v60, v{kb+i+1}, v{wb+2}")
            a(f"v_fmac_f32 v60, v{kb+i+2}, v{wb+1}")
            a(f"v_fmac_f32 v60, v{kb+i+3}, v{wb+0}")
            a(f"v_cvt_pk_bf16_f32 v60, v60, v60")
            a(f"v_lshlrev_b32 v60, 16, v60")
            if sh == 'lo':
                a(f"v_lshlrev_b32 v61, 16, v{36+i}")
            else:
                a(f"v_and_b32 v61, 0xffff0000, v{36+i}")
            a(f"v_mul_f32 v{ob+i}, v60, v61")
    for i in range(8):
        a(f"v_cvt_pk_bf16_f32 v{16+i}, v{104+15-2*i}, v{104+14-2*i}")
        a(f"v_cvt_pk_bf16_f32 v{24+i}, v{120+15-2*i}, v{120+14-2*i}")
    a("v_sub_u32 v7, 2032, v4")
    a("v_lshlrev_b32 v7, 1, v7")
    a("v_lshl_add_u32 v7, v3, 12, v7")
    a("buffer_store_dwordx4 v[16:19], v7, s[20:23], 0 offen")
    a("buffer_store_dwordx4 v[20:23], v7, s[20:23], 0 offen offset:16")
    a("v_add_u32 v7, 4096, v7")
    a("buffer_store_dwordx4 v[24:27], v7, s[20:23], 0 offen")
    a("buffer_store_dwordx4 v[28:31], v7, s[20:23], 0 offen offset:16")
    a("s_endpgm")
    a.label("L_prep_touch")
    a("s_load_dwordx2 s[4:5], s[0:1], %d" % KA_W1)
    a("s_load_dwordx2 s[6:7], s[0:1], %d" % KA_W3)
    a("s_lshl_b32 s3, s2, 8")
    a("v_add_u32 v1, s3, v0")
    a("s_cmp_ge_u32 s2, 70")
    a("s_waitcnt lgkmcnt(0)")
    a("s_cselect_b32 s8, s6, s4")
    a("s_cselect_b32 s9, s7, s5")
    a("s_cselect_b32 s3, 17920, 0")
    a(f"s_mov_b32 s10, {D*F*2}")
    a("s_mov_b32 s11, 0x00020000")
    a("v_subrev_u32 v1, s3, v1")
    a("v_lshlrev_b32 v1, 7, v1")
    a("buffer_load_dword v2, v1, s[8:11], 0 offen")
    a.label("L_prep_end")
    a("s_endpgm")
    return a.text() + kernel_desc(name, 136, 48)
```

```python
S, D, F = 2048, 1024, 3584
MB = 1 << 20
WS_XN = 0
WS_KVT = 4 * MB
WS_H = 8 * MB
WS_YQ = 24 * MB
WS_STATS = 28 * MB
WS_FLAGS = 29 * MB + (512 << 10)
WS_SIZE = 256 * MB
KA_Q, KA_K, KA_V, KA_SK, KA_SSMK, KA_SSMD, KA_BX, KA_W1, KA_W3, KA_W2, KA_OUT, KA_DBG, KA_WS = [8*i for i in range(13)]

def srd(a, d, base, nbytes, add=0):
    if add:
        a(f"s_add_u32 s{d}, s{base}, {add}")
        a(f"s_addc_u32 s{d+1}, s{base+1}, 0")
    else:
        a(f"s_mov_b32 s{d}, s{base}")
        a(f"s_mov_b32 s{d+1}, s{base+1}")
    a(f"s_mov_b32 s{d+2}, {nbytes}")
    a(f"s_mov_b32 s{d+3}, 0x00020000")

def wave_reduce_add(a, v, t):
    a("s_nop 1")
    a(f"v_add_f32_dpp v{v}, v{v}, v{v} quad_perm:[1,0,3,2] row_mask:0xf bank_mask:0xf")
    a("s_nop 1")
    a(f"v_add_f32_dpp v{v}, v{v}, v{v} quad_perm:[2,3,0,1] row_mask:0xf bank_mask:0xf")
    a("s_nop 1")
    a(f"v_add_f32_dpp v{v}, v{v}, v{v} row_half_mirror row_mask:0xf bank_mask:0xf")
    a("s_nop 1")
    a(f"v_add_f32_dpp v{v}, v{v}, v{v} row_mirror row_mask:0xf bank_mask:0xf")
    a(f"v_mov_b32 v{t}, v{v}")
    a("s_nop 1")
    a(f"v_permlane16_swap_b32 v{v}, v{t}")
    a("s_nop 1")
    a(f"v_add_f32 v{v}, v{v}, v{t}")
    a(f"v_mov_b32 v{t}, v{v}")
    a("s_nop 1")
    a(f"v_permlane32_swap_b32 v{v}, v{t}")
    a("s_nop 1")
    a(f"v_add_f32 v{v}, v{v}, v{t}")

WS_STAMP = WS_STATS + (1 << 20)
def stamp_store(a, s_wv, nw_shift=3, area=0, ws=4):
    a("s_sub_u32 s72, s72, s64")
    a("s_sub_u32 s74, s74, s66")
    a("s_sub_u32 s70, s70, s68")
    a("s_sub_u32 s68, s68, s64")
    srd(a, 76, ws, 1 << 20, add=WS_STAMP + (area << 20))
    a(f"s_lshl_b32 s80, s2, {nw_shift}")
    a(f"s_add_u32 s80, s80, s{s_wv}")
    a("s_lshl_b32 s80, s80, 5")
    a("v_mov_b32 v5, s80")
    a("v_mov_b32 v8, s72")
    a("v_mov_b32 v9, s74")
    a("v_mov_b32 v10, s68")
    a("v_mov_b32 v11, s70")
    a("v_mov_b32 v12, s66")
    a("v_mov_b32 v13, s67")
    a("s_nop 1")
    a("buffer_store_dwordx4 v[8:11], v5, s[76:79], 0 offen")
    a("buffer_store_dwordx2 v[12:13], v5, s[76:79], 0 offen offset:16")

def read_stamps(ws, nwg, nw, np, torch, area=0):
    base = WS_STAMP + (area << 20)
    st = ws[base:base + nwg*8*32].view(torch.int32).cpu().numpy().reshape(nwg, 8, 8)[:, :nw].reshape(-1, 8)
    tot, rt, pro, loop = [np.median(st[:, i]) for i in range(4)]
    rt0 = st[:, 4].astype(np.int64) & 0xffffffff
    span = ((rt0 + st[:, 1]).max() - rt0.min()) / 100
    return "total %d cyc, clock %.3f GHz, prologue %d, loop %d, epi %d, span %.2f us" % (tot, tot/rt/10, pro, loop, tot-pro-loop, span)

def stamp_begin(a):
    a("s_memtime s[64:65]")
    a("s_memrealtime s[66:67]")
def stamp_mid(a, which):
    a("s_memtime s[68:69]" if which == 0 else "s_memtime s[70:71]")
def stamp_end(a, s_wv, area, ws=4):
    a("s_waitcnt vmcnt(0) lgkmcnt(0)")
    a("s_memtime s[72:73]")
    a("s_memrealtime s[74:75]")
    a("s_waitcnt lgkmcnt(0)")
    stamp_store(a, s_wv, area=area, ws=ws)
def raw_stamps(ws, nwg, nw, np, torch, area=0):
    base = WS_STAMP + (area << 20)
    st = ws[base:base + nwg*8*32].view(torch.int32).cpu().numpy().reshape(nwg, 8, 8)[:, :nw].reshape(-1, 8)
    rt0 = st[:, 4].astype(np.int64) & 0xffffffff
    return rt0.min(), (rt0 + st[:, 1]).max()
```

```python
from asmgen import *
from gen_common import *

STG = 30720
XB = 16384
WB = 7168
NS = 5
LDS_BYTES = STG * NS

def gen_gemm1b(name="gemm1_kernel", PD=6, dma_groups=None, no_dma=False, no_lds=False, stamp=False, nwg=256, xsrc_ws=True, st_flags="", touch=True):
    a = Asm()
    a.raw(kernel_header(name))
    AF = 32
    BF = 88
    GA = 128
    VA0, VA1, VAS, VB = 8, 9, 10, 11
    VDX = 12
    VDW = 16
    S_XSRD = 8; S_WSRD = [12, 16, 20, 24]; S_HSRD = 28
    S_WV = 32; S_XO = 33; S_WO = 34; S_SLOT = [36, 37, 38, 39]; S_XSLOT = [40, 41, 42, 43]; S_CNT = 35
    S_RT = 44; S_CT = 45; S_NEGL2E = 46; S_RD = 47; S_DM = 48; S_DELTA = 49
    a(f"s_cmp_ge_u32 s2, {nwg}")
    a(f"s_cbranch_scc1 {name}_end")
    if stamp:
        a("s_memtime s[64:65]")
        a("s_memrealtime s[66:67]")
    a(f"s_load_dwordx2 s[4:5], s[0:1], {KA_WS}")
    a(f"s_load_dwordx2 s[50:51], s[0:1], {KA_W1}")
    a(f"s_load_dwordx2 s[52:53], s[0:1], {KA_W3}")
    a("v_lshrrev_b32 v1, 6, v0")
    a("v_and_b32 v2, 63, v0")
    a("s_nop 0")
    a(f"v_readfirstlane_b32 s{S_WV}, v1")
    a("s_and_b32 s54, s2, 7")
    a("s_lshr_b32 s55, s2, 3")
    a("s_and_b32 s56, s54, 1")
    a("s_lshl_b32 s56, s56, 2")
    a("s_and_b32 s57, s55, 3")
    a(f"s_add_u32 s{S_RT}, s56, s57")
    a("s_lshr_b32 s56, s54, 1")
    a("s_lshl_b32 s56, s56, 3")
    a("s_lshr_b32 s57, s55, 2")
    a(f"s_add_u32 s{S_CT}, s56, s57")
    a("s_waitcnt lgkmcnt(0)")
    srd(a, S_XSRD, 4, S*D*2, add=WS_XN)
    srd(a, S_HSRD, 4, S*F*2, add=WS_H)
    a(f"s_mov_b32 s{S_NEGL2E}, 0xbfb8aa3b")
    if touch:
        srd(a, 80, 50, D*F*2)
        srd(a, 84, 52, D*F*2)
        a(f"s_lshl_b32 s54, s2, 2")
        a(f"s_add_u32 s54, s54, s{S_WV}")
        a("s_lshl_b32 s54, s54, 9")
        a("v_lshlrev_b32 v23, 7, v2")
        a("v_add_u32 v23, s54, v23")
        a("v_mov_b32 v24, 0x80000000")
        a("v_cmp_gt_u32 vcc, 4, v2")
        a("s_nop 1")
        a("v_cndmask_b32 v23, v24, v23, vcc")
        a(f"s_mov_b32 s88, {192*7168}")
    a("v_lshrrev_b32 v3, 4, v2")
    a("v_sub_u32 v3, 0, v3")
    a("v_xor_b32 v3, v3, v2")
    a("v_and_b32 v3, 3, v3")
    a("v_lshrrev_b32 v4, 2, v2")
    a(f"s_lshl_b32 s54, s{S_RT}, 8")
    a(f"s_lshl_b32 s55, s{S_WV}, 6")
    a("s_add_u32 s54, s54, s55")
    a("v_add_u32 v4, s54, v4")
    a("v_lshlrev_b32 v4, 11, v4")
    a(f"v_lshl_add_u32 v{VDX}, v3, 4, v4")
    for ii in range(1, 4):
        a(f"v_add_u32 v{VDX+ii}, {ii*32768}, v{VDX}")
    for ii in range(4):
        a(f"s_lshl_b32 s{S_XSLOT[ii]}, s{S_WV}, 12")
        a(f"s_add_u32 s{S_XSLOT[ii]}, s{S_XSLOT[ii]}, {ii*1024}")
    a(f"s_lshl_b32 s54, s{S_WV}, 2")
    a(f"s_mul_i32 s55, s{S_WV}, 3")
    a("s_add_u32 s55, s55, 2")
    a(f"s_cmp_lt_u32 s{S_WV}, 2")
    a("s_cselect_b32 s54, s54, s55")
    a(f"s_mul_i32 s58, s{S_CT}, 224")
    a(f"s_and_b32 s59, s{S_CT}, 1")
    a("s_lshl_b32 s60, s59, 5")
    a("s_add_u32 s60, s60, s58")
    a("s_xor_b32 s59, s59, 1")
    a("s_mul_i32 s61, s59, 192")
    a("s_add_u32 s61, s61, s58")
    a("v_lshrrev_b32 v3, 4, v2")
    a("v_bfe_u32 v4, v2, 2, 2")
    a("v_and_b32 v5, 3, v2")
    for i in range(4):
        a(f"s_add_u32 s55, s54, {i}")
        a("s_cmp_ge_u32 s55, 7")
        a(f"s_cselect_b32 s{S_WSRD[i]}, s52, s50")
        a(f"s_cselect_b32 s{S_WSRD[i]+1}, s53, s51")
        a("s_cselect_b32 s56, 7, 0")
        a(f"s_mov_b32 s{S_WSRD[i]+2}, {D*F*2}")
        a(f"s_mov_b32 s{S_WSRD[i]+3}, 0x00020000")
        a("s_sub_u32 s56, s55, s56")
        a(f"s_lshl_b32 s{S_SLOT[i]}, s55, 10")
        a(f"s_add_u32 s{S_SLOT[i]}, s{S_SLOT[i]}, {XB}")
        a("s_lshl_b32 s57, s56, 2")
        a("v_add_u32 v6, s57, v3")
        a("v_mul_u32_u24 v7, 86, v6")
        a("v_lshrrev_b32 v7, 8, v7")
        a("v_mul_u32_u24 v20, 3, v7")
        a("v_sub_u32 v6, v6, v20")
        a("v_and_b32 v20, 2, v7")
        a("v_xor_b32 v20, v20, v5")
        a("v_lshlrev_b32 v20, 4, v20")
        a("v_lshl_add_u32 v20, v6, 6, v20")
        a("v_lshl_add_u32 v7, v7, 2, v4")
        a("v_mul_u32_u24 v7, 0x1c00, v7")
        a("v_add3_u32 v21, v7, v20, s60")
        a("v_and_b32 v6, 2, v3")
        a("v_lshlrev_b32 v6, 1, v6")
        a("v_and_b32 v7, 1, v3")
        a("v_add_u32 v6, v6, v7")
        a("v_and_b32 v7, 2, v5")
        a("v_add_u32 v6, v6, v7")
        a("v_lshl_add_u32 v6, v6, 2, v4")
        a("v_mul_u32_u24 v6, 0x1c00, v6")
        a("v_and_b32 v7, 1, v5")
        a("v_lshlrev_b32 v7, 4, v7")
        a("v_add3_u32 v22, v6, v7, s61")
        a("s_cmp_eq_u32 s56, 6")
        a("s_cselect_b64 vcc, -1, 0")
        a(f"v_cndmask_b32 v{VDW+i}, v21, v22, vcc")
    a("v_lshrrev_b32 v3, 4, v2")
    a("v_bfe_u32 v4, v2, 2, 2")
    a("v_and_b32 v5, 3, v2")
    a("v_lshlrev_b32 v6, 6, v4")
    a("v_lshl_add_u32 v6, v5, 3, v6")
    a("v_and_b32 v7, 1, v3")
    a("v_mul_u32_u24 v20, 1536, v3")
    a("v_add_u32 v20, v20, v6")
    a(f"v_lshl_add_u32 v{VA0}, v7, 5, v20")
    a("v_xor_b32 v21, 1, v7")
    a(f"v_lshl_add_u32 v{VA1}, v21, 5, v20")
    a("v_lshrrev_b32 v21, 1, v3")
    a("v_lshlrev_b32 v21, 9, v21")
    a("v_add_u32 v21, v21, v6")
    a(f"v_lshl_add_u32 v{VAS}, v7, 5, v21")
    a("v_lshrrev_b32 v6, 2, v2")
    a("v_sub_u32 v6, 0, v6")
    a("v_xor_b32 v6, v6, v3")
    a("v_and_b32 v6, 3, v6")
    a("v_and_b32 v7, 15, v2")
    a(f"s_lshl_b32 s54, s{S_WV}, 6")
    a("v_add_u32 v7, s54, v7")
    a("v_lshlrev_b32 v7, 6, v7")
    a(f"v_lshl_add_u32 v{VB}, v6, 4, v7")
    for i in range(112):
        a(f"v_mov_b32 v{GA+i}, 0")
    for i in range(112):
        a(f"v_accvgpr_write_b32 a{i}, 0")
    a(f"s_mov_b32 s{S_XO}, 0")
    a(f"s_mov_b32 s{S_WO}, 0")
    a(f"s_mov_b32 s{S_DM}, 0")
    a(f"s_mov_b32 s{S_RD}, 0")
    a(f"s_cmp_lt_u32 s{S_WV}, 2")
    a(f"s_cbranch_scc0 {name}_pathB")

    order = []
    for l in range(7):
        order.append((0, l)); order.append((1, l))
    def dma(idx, tag):
        if idx < 4:
            a(f"s_add_u32 m0, s{S_DM}, s{S_XSLOT[idx]}")
            a("s_nop 0")
            a.vmem(f"buffer_load_dwordx4 v{VDX+idx}, s[{S_XSRD}:{S_XSRD+3}], s{S_XO} offen lds", tag=tag)
        else:
            i = idx - 4
            a(f"s_add_u32 m0, s{S_DM}, s{S_SLOT[i]}")
            a("s_nop 0")
            a.vmem(f"buffer_load_dwordx4 v{VDW+i}, s[{S_WSRD[i]}:{S_WSRD[i]+3}], s{S_WO} offen lds", tag=tag)
    def dma_adv():
        a(f"s_add_u32 s{S_XO}, s{S_XO}, 64")
        a(f"s_add_u32 s{S_WO}, s{S_WO}, {32*7168}")
        a(f"s_add_u32 s{S_DM}, s{S_DM}, {STG}")
        a(f"s_cmp_eq_u32 s{S_DM}, {STG*NS}")
        a(f"s_cselect_b32 s{S_DM}, 0, s{S_DM}")
    def do_touch(par):
        if not touch:
            return
        a.vmem(f"buffer_load_dword v25, v23, s[{80 if par == 0 else 84}:{83 if par == 0 else 87}], s88 offen", tag=("t", 0))
        if par == 1:
            a(f"s_add_u32 s88, s88, {64*7168}")
    def rd_adv():
        a(f"s_add_u32 s{S_DELTA}, s{S_RD}, {STG}")
        a(f"s_cmp_eq_u32 s{S_DELTA}, {STG*NS}")
        a(f"s_cselect_b32 s62, 0, s{S_DELTA}")
        a(f"s_sub_u32 s{S_DELTA}, s62, s{S_RD}")
        a(f"s_mov_b32 s{S_RD}, s62")
        for v in (VA0, VA1, VAS, VB):
            a(f"v_add_u32 v{v}, s{S_DELTA}, v{v}")
    def rd_a(ai, tag):
        m, l = order[ai]
        Wm = XB + m*WB
        for hf in range(2):
            if l < 6:
                base = VA0 if (l & 1) == 0 else VA1
                imm = Wm + (hf*3 + (l >> 1))*256
            else:
                base = VAS
                imm = Wm + 6144 + hf*256
            a.lds(f"ds_read_b64_tr_b16 v[{AF+4*ai+2*hf}:{AF+4*ai+2*hf+1}], v{base} offset:{imm}", tag=tag)
    def rd_b(bs, bt, tag):
        r = BF + 16*bs + 4*bt
        a.lds(f"ds_read_b128 v[{r}:{r+3}], v{VB} offset:{bt*1024}", tag=tag)
    def acc(m, l, bt):
        i = (l*4 + bt)*4
        return f"v[{GA+i}:{GA+i+3}]" if m == 0 else f"a[{i}:{i+3}]"

    def path(nslots, lbl):
        nd = 4 + nslots
        dg = dma_groups or [0, 1, 2, 3, 4, 5, 6, 7]
        dg = dg[:nd]
        for st in range(NS - 1):
            for i in range(nd):
                dma(i, ("d", st))
            dma_adv()
            do_touch(st % 2)
        a.wait_vm(("d", 0))
        a("s_barrier")
        for ai in range(PD):
            rd_a(ai, ("a", 0, ai))
            if ai < 4:
                rd_b(0, ai, ("b", 0, ai))
        if stamp:
            a("s_memtime s[68:69]")
        entry_l = None
        a(f"s_mov_b32 s{S_CNT}, 16")
        a.label(f"{lbl}_loop")
        tt = [("t", 0)] if touch else []
        assert a.vm == tt + sum([[("d", k)]*nd + tt for k in (1, 2, 3)], []), a.vm
        entry_l = list(a.lgkm); entry_v = list(a.vm)
        for ph in range(2):
            a.wait_vm(("d", ph + 1))
            a("s_barrier")
            di = 0
            for g in range(14):
                m, l = order[g]
                tags = [("a", ph, g)]
                if g == 0:
                    tags += [("b", ph, bt) for bt in range(4)]
                a.wait_lgkm(*tags)
                for bt in range(4):
                    r = BF + 16*ph + 4*bt
                    a(f"v_mfma_f32_16x16x32_bf16 {acc(m,l,bt)}, v[{AF+4*g}:{AF+4*g+3}], v[{r}:{r+3}], {acc(m,l,bt)}")
                    if bt == 0:
                        ga = g + PD
                        if no_lds:
                            a.lgkm = []
                        elif ga < 14:
                            rd_a(ga, ("a", ph, ga))
                        else:
                            rd_a(ga - 14, ("a", 1 - ph, ga - 14))
                    if bt == 1 and not no_lds:
                        gb = g - (14 - PD)
                        if 0 <= gb < 4:
                            rd_b(1 - ph, gb, ("b", 1 - ph, gb))
                    if bt == 2:
                        while di < nd and dg[di] == g:
                            if not no_dma:
                                dma(di, ("d", ph + 4))
                            di += 1
                            if di == nd:
                                dma_adv()
                                if not no_dma:
                                    do_touch(ph)
                    if bt == 3 and g == 14 - PD - 1:
                        rd_adv()
            assert di == nd
        if not (no_dma or no_lds):
            assert a.lgkm == entry_l, (a.lgkm, entry_l)
            assert [(t, k - 2 if t == "d" else k) for (t, k) in a.vm] == entry_v, (a.vm, entry_v)
        a(f"s_sub_u32 s{S_CNT}, s{S_CNT}, 1")
        a(f"s_cmp_lg_u32 s{S_CNT}, 0")
        a(f"s_cbranch_scc1 {lbl}_loop")
        a.lgkm = []; a.vm = []

    path(4, f"{name}_A")
    a(f"s_branch {name}_epi")
    a.label(f"{name}_pathB")
    path(3, f"{name}_B")
    a.label(f"{name}_epi")
    if stamp:
        a("s_memtime s[70:71]")
    a("s_waitcnt vmcnt(0) lgkmcnt(0)")
    srd(a, 80, 4, 4096, add=WS_FLAGS)
    a("s_lshl_b32 s58, s2, 4")
    a("v_lshlrev_b32 v23, 2, v0")
    a("v_add_u32 v23, s58, v23")
    a("v_mov_b32 v24, 0x80000000")
    a("v_cmp_gt_u32 vcc, 4, v0")
    a("v_mov_b32 v25, 0")
    a("s_nop 0")
    a("v_cndmask_b32 v23, v24, v23, vcc")
    a("buffer_store_dword v25, v23, s[80:83], 0 offen")
    if touch:
        a(f"s_load_dwordx2 s[54:55], s[0:1], {KA_W2}")
        a(f"s_load_dwordx2 s[56:57], s[0:1], {KA_SSMK}")
        a(f"s_lshl_b32 s58, s2, 2")
        a(f"s_add_u32 s58, s58, s{S_WV}")
        a("s_mul_i32 s59, s58, 56")
        a("v_add_u32 v23, s59, v2")
        a("v_lshlrev_b32 v23, 7, v23")
        a("v_mov_b32 v24, 0x80000000")
        a("v_cmp_gt_u32 vcc, 56, v2")
        a("s_waitcnt lgkmcnt(0)")
        a("v_cndmask_b32 v23, v24, v23, vcc")
        srd(a, 80, 54, F*D*2)
        srd(a, 84, 56, D*S*2)
        a("buffer_load_dword v25, v23, s[80:83], 0 offen")
        a("s_lshl_b32 s59, s58, 5")
        a("v_add_u32 v23, s59, v2")
        a("v_lshlrev_b32 v23, 7, v23")
        a("v_cmp_gt_u32 vcc, 32, v2")
        a("s_nop 1")
        a("v_cndmask_b32 v23, v24, v23, vcc")
        a("buffer_load_dword v26, v23, s[84:87], 0 offen")
    a("s_nop 7")
    a("s_nop 7")
    a(f"s_lshl_b32 s54, s{S_RT}, 4")
    a(f"s_lshl_b32 s55, s{S_WV}, 2")
    a("s_add_u32 s54, s54, s55")
    a("s_mul_i32 s54, s54, 112")
    a(f"s_mul_i32 s58, s{S_CT}, 224")
    a(f"s_and_b32 s59, s{S_CT}, 1")
    a("s_lshl_b32 s60, s59, 5")
    a("s_add_u32 s60, s60, s58")
    a("s_lshr_b32 s60, s60, 6")
    a("s_xor_b32 s59, s59, 1")
    a("s_mul_i32 s61, s59, 192")
    a("s_add_u32 s61, s61, s58")
    a("s_lshr_b32 s55, s61, 6")
    a("s_bfe_u32 s61, s61, 0x10005")
    a("s_lshl_b32 s61, s61, 3")
    a("s_add_u32 s60, s60, s54")
    a("s_lshl_b32 s60, s60, 10")
    a("s_add_u32 s55, s55, s54")
    a("s_lshl_b32 s55, s55, 10")
    a("s_add_u32 s55, s55, s61")
    a("v_lshlrev_b32 v3, 4, v2")
    a("v_add_u32 v4, s55, v3")
    a("v_add_u32 v3, s60, v3")
    T0 = 32
    def hcalc(l, bt, T):
        G = GA + (l*4 + bt)*4
        U = (l*4 + bt)*4
        for r in range(4):
            a(f"v_accvgpr_read_b32 v{T+4+r}, a{U+r}")
        for r in range(4):
            a(f"v_mul_f32 v{T+r}, s{S_NEGL2E}, v{G+r}")
        for r in range(4):
            a(f"v_exp_f32 v{T+r}, v{T+r}")
        for r in range(4):
            a(f"v_mul_f32 v{T+4+r}, v{T+4+r}, v{G+r}")
        for r in range(4):
            a(f"v_add_f32 v{T+r}, 1.0, v{T+r}")
        for r in range(4):
            a(f"v_rcp_f32 v{T+r}, v{T+r}")
        a("s_nop 0")
        for r in range(4):
            a(f"v_mul_f32 v{T+4+r}, v{T+4+r}, v{T+r}")
    for bt in range(4):
        for p in range(3):
            T = T0 + ((bt*3 + p) % 2) * 32
            hcalc(2*p, bt, T)
            a(f"v_cvt_pk_bf16_f32 v{T+8}, v{T+4}, v{T+5}")
            a(f"v_cvt_pk_bf16_f32 v{T+9}, v{T+6}, v{T+7}")
            hcalc(2*p+1, bt, T+16)
            a(f"v_cvt_pk_bf16_f32 v{T+10}, v{T+20}, v{T+21}")
            a(f"v_cvt_pk_bf16_f32 v{T+11}, v{T+22}, v{T+23}")
            a(f"buffer_store_dwordx4 v[{T+8}:{T+11}], v3, s[{S_HSRD}:{S_HSRD+3}], 0 offen offset:{p*1024}{st_flags}")
        T = T0 + 64
        hcalc(6, bt, T)
        a(f"v_cvt_pk_bf16_f32 v{T+8}, v{T+4}, v{T+5}")
        a(f"v_cvt_pk_bf16_f32 v{T+9}, v{T+6}, v{T+7}")
        a(f"buffer_store_dwordx2 v[{T+8}:{T+9}], v4, s[{S_HSRD}:{S_HSRD+3}], 0 offen{st_flags}")
        if bt < 3:
            a(f"v_add_u32 v3, {112*1024}, v3")
            a(f"v_add_u32 v4, {112*1024}, v4")
    if stamp:
        a("s_waitcnt vmcnt(0)")
        a("s_memtime s[72:73]")
        a("s_memrealtime s[74:75]")
        a("s_waitcnt lgkmcnt(0)")
        stamp_store(a, S_WV, area=1)
    a.label(f"{name}_end")
    a("s_endpgm")
    return a.text() + kernel_desc(name, 240 + 112, 96, accum=240)
```

```python
from asmgen import *
from gen_common import *

STG2 = 16384
NS2 = 4
G2B = STG2 * NS2
CPY = 4160
UOFF = 4 * CPY
UB = 4608
WVB = UOFF + UB
K2_LDS = G2B + 4 * WVB

def gen_k2(name="k2_kernel", PH=8, stamp=False, nwg=256, mf_per_bar=20, use_xn=True, prio=True, noconv=False):
    a = Asm()
    a.raw(kernel_header(name))
    S_WV = 32
    a(f"s_cmp_ge_u32 s2, {nwg}")
    a(f"s_cbranch_scc1 {name}_end")
    if stamp:
        stamp_begin(a)
    a(f"s_load_dwordx2 s[4:5], s[0:1], {KA_WS}")
    a(f"s_load_dwordx2 s[50:51], s[0:1], {KA_W2}")
    a(f"s_load_dwordx2 s[52:53], s[0:1], {KA_OUT}")
    a(f"s_load_dwordx2 s[54:55], s[0:1], {KA_Q}")
    a(f"s_load_dwordx2 s[44:45], s[0:1], {KA_SSMK}")
    a(f"s_load_dwordx2 s[46:47], s[0:1], {KA_SSMD}")
    a(f"s_load_dwordx2 s[48:49], s[0:1], {KA_DBG}")
    a("v_lshrrev_b32 v1, 6, v0")
    a("v_and_b32 v2, 63, v0")
    a("s_nop 0")
    a(f"v_readfirstlane_b32 s{S_WV}, v1")
    a("s_nop 3")
    a(f"s_cmp_ge_u32 s{S_WV}, 4")
    a(f"s_cbranch_scc1 {name}_conv")
    HF = 64; AF = 32; ACC = 128; EP = 160
    VH0, VH1 = 8, 9
    VA = [10, 11, 12, 13]
    VD = 14
    S_HSRD = 8; S_WSRD = 12; S_OSRD = 16; S_XSRD = 20; S_NSRD = 24; S_YSRD = 28
    S_HO = 33; S_WO = 34; S_CNT = 35; S_RT = 36; S_CT = 37; S_DM = 38; S_SLOT = 39
    if prio:
        a("s_setprio 2")
    a("s_and_b32 s56, s2, 7")
    a("s_lshr_b32 s57, s2, 3")
    a("s_and_b32 s58, s56, 3")
    a("s_lshl_b32 s58, s58, 2")
    a("s_and_b32 s59, s57, 3")
    a(f"s_add_u32 s{S_RT}, s58, s59")
    a("s_lshr_b32 s58, s56, 2")
    a("s_lshl_b32 s58, s58, 3")
    a("s_lshr_b32 s59, s57, 2")
    a(f"s_add_u32 s{S_CT}, s58, s59")
    a("v_lshrrev_b32 v3, 3, v2")
    a("v_bfe_u32 v4, v2, 1, 2")
    a("v_bfe_u32 v5, v2, 4, 2")
    a("v_xor_b32 v4, v4, v5")
    a("v_and_b32 v5, 1, v2")
    a("v_lshl_add_u32 v4, v4, 1, v5")
    a("v_lshlrev_b32 v4, 4, v4")
    a(f"s_lshl_b32 s56, s{S_WV}, 5")
    a("v_add_u32 v3, s56, v3")
    a("v_lshlrev_b32 v3, 11, v3")
    a(f"s_lshl_b32 s56, s{S_CT}, 7")
    a(f"v_add3_u32 v{VD}, v3, v4, s56")
    for ii in range(1, 4):
        a(f"v_add_u32 v{VD+ii}, {ii*8*2048}, v{VD}")
    a(f"s_lshl_b32 s{S_SLOT}, s{S_WV}, 12")
    a(f"s_lshl_b32 s56, s{S_RT}, 3")
    a(f"s_lshl_b32 s57, s{S_WV}, 1")
    a("s_add_u32 s56, s56, s57")
    a(f"s_mul_i32 s56, s56, {112*1024}")
    a("v_lshlrev_b32 v3, 4, v2")
    a(f"v_add_u32 v{VH0}, s56, v3")
    a(f"v_add_u32 v{VH1}, {112*1024}, v{VH0}")
    a(f"s_mov_b32 s{S_HO}, 0")
    a(f"s_mov_b32 s{S_WO}, 0")
    a(f"s_mov_b32 s{S_DM}, 0")
    a("s_waitcnt lgkmcnt(0)")
    srd(a, S_HSRD, 4, S*F*2, add=WS_H)
    srd(a, S_WSRD, 50, F*D*2)

    def dma(ii, tag):
        a(f"s_add_u32 m0, s{S_DM}, s{S_SLOT}")
        if ii:
            a(f"s_add_u32 m0, m0, {ii*1024}")
        a("s_nop 0")
        a.vmem(f"buffer_load_dwordx4 v{VD+ii}, s[{S_WSRD}:{S_WSRD+3}], s{S_WO} offen lds", tag=tag)
    def dma_adv():
        a(f"s_add_u32 s{S_WO}, s{S_WO}, {128*2048}")
        a(f"s_add_u32 s{S_DM}, s{S_DM}, {STG2}")
        a(f"s_and_b32 s{S_DM}, s{S_DM}, {STG2*NS2-1}")
    def ld_h(slot, tag):
        for bt in range(2):
            r = HF + slot*8 + bt*4
            a.vmem(f"buffer_load_dwordx4 v[{r}:{r+3}], v{VH0+bt}, s[{S_HSRD}:{S_HSRD+3}], s{S_HO} offen", tag=tag)
        a(f"s_add_u32 s{S_HO}, s{S_HO}, 1024")
    def rd_a(aset, pos, uu, dt, tag):
        for hf in range(2):
            imm = pos*STG2 + (32*uu + 16*hf)*128
            r = AF + aset*16 + dt*4 + 2*hf
            a.lds(f"ds_read_b64_tr_b16 v[{r}:{r+1}], v{VA[dt]} offset:{imm}", tag=tag)

    srd(a, S_OSRD, 52, S*D*2)
    srd(a, S_XSRD, 54, S*D*2)
    srd(a, S_NSRD, 4, S*D*2, add=WS_XN)
    srd(a, S_YSRD, 4, S*D*2, add=WS_YQ)
    for ii in range(4):
        dma(ii, ("d", 0))
    dma_adv()
    for sl in range(PH):
        dma(sl % 4, ("d", 1 + sl // 4))
        if sl % 4 == 3:
            dma_adv()
        ld_h(sl, ("h", sl))
    a("v_lshrrev_b32 v3, 4, v2")
    a("v_bfe_u32 v4, v2, 2, 2")
    a("v_and_b32 v5, 3, v2")
    a("v_lshl_add_u32 v3, v3, 2, v4")
    a("v_bfe_u32 v4, v3, 1, 2")
    a("v_lshlrev_b32 v3, 7, v3")
    a("v_lshl_add_u32 v3, v5, 3, v3")
    for dt in range(4):
        a(f"v_xor_b32 v5, {dt}, v4")
        a(f"v_lshl_add_u32 v{VA[dt]}, v5, 5, v3")
    for i in range(32):
        a(f"v_mov_b32 v{ACC+i}, 0")
    a("v_lshrrev_b32 v3, 4, v2")
    a("v_and_b32 v4, 1, v3")
    a("v_lshlrev_b32 v4, 4, v4")
    a("v_lshrrev_b32 v5, 1, v3")
    a("v_lshl_add_u32 v4, v5, 3, v4")
    a(f"s_lshl_b32 s56, s{S_CT}, 6")
    a("v_add_u32 v4, s56, v4")
    a(f"s_lshl_b32 s56, s{S_RT}, 7")
    a(f"s_lshl_b32 s57, s{S_WV}, 5")
    a("s_add_u32 s56, s56, s57")
    a("v_and_b32 v5, 15, v2")
    a("v_add_u32 v5, s56, v5")
    a("v_lshlrev_b32 v6, 11, v5")
    a("v_lshl_add_u32 v6, v4, 1, v6")
    a("v_lshlrev_b32 v7, 12, v4")
    a("v_lshl_add_u32 v7, v5, 3, v7")
    a.wait_vm(("d", 0))
    a("s_barrier")
    for dt in range(4):
        rd_a(0, 0, 0, dt, ("a", 0, dt))
    if stamp:
        stamp_mid(a, 0)
    a(f"s_mov_b32 s{S_CNT}, 7")
    a.label(f"{name}_loop")
    entry_l = list(a.lgkm); entry_v = list(a.vm)
    step = 0
    for pos in range(NS2):
        nxt = (pos + 1) % NS2
        a.wait_vm(("d", nxt))
        a("s_barrier")
        for uu in range(4):
            aset = step % 2
            slot = step % PH
            npos, nuu = (pos, uu + 1) if uu < 3 else (nxt, 0)
            a.wait_vm(("h", slot))
            for dt in range(4):
                a.wait_lgkm(("a", aset, dt))
                for bt in range(2):
                    r = HF + slot*8 + bt*4
                    c = ACC + (dt*2 + bt)*4
                    a(f"v_mfma_f32_16x16x32_bf16 v[{c}:{c+3}], v[{AF+aset*16+dt*4}:{AF+aset*16+dt*4+3}], v[{r}:{r+3}], v[{c}:{c+3}]")
                    if bt == 0:
                        rd_a(1 - aset, npos, nuu, dt, ("a", 1 - aset, dt))
                if dt == 1:
                    dma(uu, ("d", (pos + 3) % NS2))
                    if uu == 3:
                        dma_adv()
            ld_h(slot, ("h", slot))
            step += 1
    assert a.lgkm == entry_l, (a.lgkm, entry_l)
    assert a.vm == entry_v, (a.vm, entry_v)
    a(f"s_sub_u32 s{S_CNT}, s{S_CNT}, 1")
    a(f"s_cmp_lg_u32 s{S_CNT}, 0")
    a(f"s_cbranch_scc1 {name}_loop")
    a.lgkm = []; a.vm = []
    if stamp:
        stamp_mid(a, 1)
    LX = 32
    k = 0
    for bt in range(2):
        for dp in range(2):
            r = LX + k*12
            a(f"v_add_u32 v18, {bt*16*2048 + dp*64}, v6")
            a.vmem(f"buffer_load_dwordx4 v[{r}:{r+3}], v18, s[{S_XSRD}:{S_XSRD+3}], 0 offen", tag=("e", k))
            a.vmem(f"buffer_load_dwordx4 v[{r+4}:{r+7}], v18, s[{S_NSRD}:{S_NSRD+3}], 0 offen", tag=("e", k))
            k += 1
    srd(a, 40, 4, 4096, add=WS_FLAGS)
    a(f"s_lshl_b32 s56, s{S_CT}, 8")
    a("v_lshlrev_b32 v19, 2, v2")
    a("v_add_u32 v19, s56, v19")
    a("s_mov_b32 s58, %d" % (1 if noconv else 100000))
    a.label(f"{name}_poll")
    a("buffer_load_dword v20, v19, s[40:43], 0 offen sc1")
    a("s_waitcnt vmcnt(0)")
    a("v_cmp_ne_u32 vcc, 0, v20")
    a("s_nop 3")
    a("s_cmp_eq_u64 vcc, -1")
    a(f"s_cbranch_scc1 {name}_polled")
    a("s_sleep 2")
    a("s_sub_u32 s58, s58, 1")
    a("s_cmp_lg_u32 s58, 0")
    a(f"s_cbranch_scc1 {name}_poll")
    a.label(f"{name}_polled")
    a.vm = []
    k = 0
    for bt in range(2):
        for dp in range(2):
            r = LX + k*12
            a(f"v_add_u32 v19, {bt*16*8 + dp*8*16384}, v7")
            a(f"v_add_u32 v20, 16384, v19")
            a.vmem(f"buffer_load_dwordx2 v[{r+8}:{r+9}], v19, s[{S_YSRD}:{S_YSRD+3}], 0 offen sc1", tag=("e", k))
            a.vmem(f"buffer_load_dwordx2 v[{r+10}:{r+11}], v20, s[{S_YSRD}:{S_YSRD+3}], 0 offen sc1", tag=("e", k))
            k += 1
    k = 0
    P = 96
    for bt in range(2):
        for dp in range(2):
            cX = ACC + ((2*dp)*2 + bt)*4
            cY = ACC + ((2*dp+1)*2 + bt)*4
            a(f"v_cvt_pk_bf16_f32 v{P}, v{cX}, v{cX+1}")
            a(f"v_cvt_pk_bf16_f32 v{P+1}, v{cX+2}, v{cX+3}")
            a(f"v_cvt_pk_bf16_f32 v{P+2}, v{cY}, v{cY+1}")
            a(f"v_cvt_pk_bf16_f32 v{P+3}, v{cY+2}, v{cY+3}")
            a("s_nop 1")
            a(f"v_permlane16_swap_b32 v{P}, v{P+2}")
            a(f"v_permlane16_swap_b32 v{P+1}, v{P+3}")
            r = LX + k*12
            a.wait_vm(("e", k))
            for w in range(4):
                xr, nr, yr, br = r + w, r + 4 + w, r + 8 + w, P + w
                T = P + 8
                for half in range(2):
                    def unp(dst, src):
                        if half == 0:
                            a(f"v_lshlrev_b32 v{dst}, 16, v{src}")
                        else:
                            a(f"v_and_b32 v{dst}, 0xffff0000, v{src}")
                    unp(T + 0 + 4*half, nr); unp(T + 1 + 4*half, yr); unp(T + 2 + 4*half, xr); unp(T + 3 + 4*half, br)
                a(f"v_mul_f32 v{T}, v{T}, v{T+1}")
                a(f"v_mul_f32 v{T+4}, v{T+4}, v{T+5}")
                a(f"v_cvt_pk_bf16_f32 v{T}, v{T}, v{T+4}")
                a(f"v_and_b32 v{T+4}, 0xffff0000, v{T}")
                a(f"v_lshlrev_b32 v{T}, 16, v{T}")
                a(f"v_add_f32 v{T}, v{T}, v{T+2}")
                a(f"v_add_f32 v{T+4}, v{T+4}, v{T+6}")
                a(f"v_cvt_pk_bf16_f32 v{T}, v{T}, v{T+4}")
                a(f"v_and_b32 v{T+4}, 0xffff0000, v{T}")
                a(f"v_lshlrev_b32 v{T}, 16, v{T}")
                a(f"v_add_f32 v{T}, v{T}, v{T+3}")
                a(f"v_add_f32 v{T+4}, v{T+4}, v{T+7}")
                a(f"v_cvt_pk_bf16_f32 v{P+4+w}, v{T}, v{T+4}")
            a(f"v_add_u32 v18, {bt*16*2048 + dp*64}, v6")
            a(f"buffer_store_dwordx4 v[{P+4}:{P+7}], v18, s[{S_OSRD}:{S_OSRD+3}], 0 offen")
            a("s_nop 1")
            k += 1
    if stamp:
        stamp_end(a, S_WV, 2)
    a("s_endpgm")

    a.label(f"{name}_conv")
    if noconv:
        a("s_endpgm")
    a.lgkm = []; a.vm = []
    nbar = [0]
    def bar():
        a("s_barrier"); nbar[0] += 1
    S_KS = 8; S_US = 12; S_YS = 16; S_DS = 20
    AFR = 64; BFR = 32; ACC = 192; NB = 8
    a(f"s_sub_u32 s33, s{S_WV}, 4")
    a("s_lshl_b32 s34, s2, 2")
    a("s_add_u32 s56, s34, s33")
    a("s_lshl_b32 s57, s56, 12")
    a(f"s_mul_i32 s59, s33, {WVB}")
    a(f"s_add_u32 s59, s59, {G2B}")
    a("v_lshlrev_b32 v3, 4, v2")
    a("s_waitcnt lgkmcnt(0)")
    a(f"s_add_u32 s{S_KS}, s44, s57")
    a(f"s_addc_u32 s{S_KS+1}, s45, 0")
    a(f"s_mov_b32 s{S_KS+2}, 4096")
    a(f"s_mov_b32 s{S_KS+3}, 0x00020000")
    a(f"s_add_u32 s58, s57, {WS_KVT}")
    a(f"s_add_u32 s{S_US}, s4, s58")
    a(f"s_addc_u32 s{S_US+1}, s5, 0")
    a(f"s_mov_b32 s{S_US+2}, 4096")
    a(f"s_mov_b32 s{S_US+3}, 0x00020000")
    for i in range(4):
        a(f"s_add_u32 m0, s59, {UOFF + i*1024}")
        a(f"s_mov_b32 s60, {i*1024}")
        a.vmem(f"buffer_load_dwordx4 v3, s[{S_US}:{S_US+3}], s60 offen lds", tag="u")
    for rr in range(5):
        r = 32 + rr*8
        a(f"v_add_u32 v4, {(rr*1024 - 32) & 0xffffffff:#x}, v3")
        a(f"v_add_u32 v5, {(rr*1024 - 16) & 0xffffffff:#x}, v3")
        a.vmem(f"buffer_load_dwordx4 v[{r}:{r+3}], v4, s[{S_KS}:{S_KS+3}], 0 offen", tag=("h", rr))
        a.vmem(f"buffer_load_dwordx4 v[{r+4}:{r+7}], v5, s[{S_KS}:{S_KS+3}], 0 offen", tag=("h", rr))
    srd(a, S_YS, 4, S*D*2, add=WS_YQ)
    srd(a, S_DS, 46, D*2)
    a("s_lshl_b32 s57, s56, 1")
    a("v_mov_b32 v4, s57")
    a.vmem(f"buffer_load_ushort v6, v4, s[{S_DS}:{S_DS+3}], 0 offen", tag="D")
    a("v_mov_b32 v8, 0"); a("v_mov_b32 v9, 0"); a("v_mov_b32 v10, 0"); a("v_mov_b32 v11, 0")
    a(f"v_add_u32 v4, s59, v3")
    a("v_cmp_gt_u32 vcc, 32, v2")
    a("s_and_saveexec_b64 s[62:63], vcc")
    a.lds(f"ds_write_b128 v4, v[8:11] offset:{UOFF+4096}", tag="z")
    a("s_mov_b64 exec, s[62:63]")
    a("v_and_b32 v14, 15, v2")
    a("v_add_u32 v14, 1, v14")
    a("v_and_b32 v5, 3, v14")
    a(f"v_mul_u32_u24 v5, {CPY}, v5")
    a("v_lshrrev_b32 v14, 2, v14")
    a("v_lshl_add_u32 v5, v14, 3, v5")
    a("v_lshrrev_b32 v7, 4, v2")
    a("v_lshl_add_u32 v5, v7, 4, v5")
    a("v_add_u32 v12, s59, v5")
    a("v_and_b32 v14, 15, v2")
    a("v_lshlrev_b32 v14, 5, v14")
    a(f"v_sub_u32 v14, {UOFF+480}, v14")
    a("v_lshl_add_u32 v14, v7, 4, v14")
    a("v_add_u32 v13, s59, v14")
    for i in range(32):
        a(f"v_mov_b32 v{ACC+i}, 0")
    bar()
    for rr in range(5):
        r = 32 + rr*8
        a.wait_vm(("h", rr))
        T = 72
        for i in range(5):
            a(f"v_alignbit_b32 v{T+i}, v{r+i+1}, v{r+i}, 16")
        if rr == 4:
            a("v_cmp_gt_u32 vcc, 4, v2")
            a("s_and_saveexec_b64 s[62:63], vcc")
        off = rr*1024
        for i in range(4):
            a(f"v_mov_b32 v{T+8+i}, v{r+1+i}")
            a(f"v_mov_b32 v{T+12+i}, v{T+1+i}")
        a.lds(f"ds_write_b128 v4, v[{r}:{r+3}] offset:{off}", tag="c")
        a.lds(f"ds_write_b128 v4, v[{T}:{T+3}] offset:{CPY+off}", tag="c")
        a.lds(f"ds_write_b128 v4, v[{T+8}:{T+11}] offset:{2*CPY+off}", tag="c")
        a.lds(f"ds_write_b128 v4, v[{T+12}:{T+15}] offset:{3*CPY+off}", tag="c")
        if rr == 4:
            a("s_mov_b64 exec, s[62:63]")
        a.wait_all_lgkm()
        if rr in (1, 4):
            bar()
    a.wait_all_vm()
    if stamp:
        stamp_mid(a, 0)
    def rd_A(slot, m):
        r = AFR + 4*slot
        a.lds(f"ds_read_b64 v[{r}:{r+1}], v12 offset:{64*m}", tag=("A", m))
        a.lds(f"ds_read_b64 v[{r+2}:{r+3}], v12 offset:{64*m+8}", tag=("A", m))
    def rd_B(idx, n):
        r = BFR + 4*(idx % NB)
        a.lds(f"ds_read_b128 v[{r}:{r+3}], v13 offset:{64*(63-n)}", tag=("B", idx))
    bidx = 0; nmf = 0
    for ph in range(2):
        m0 = 32*ph
        ns = list(range(64)) if ph == 0 else list(range(32))
        work = []
        for n in ns:
            ms = [m for m in range(m0, m0+32) if (m + n) % 8 == 7 and m + n <= 63]
            if ms:
                work.append((n, ms))
        a_loaded = set()
        PB = 4
        for w in range(min(PB, len(work))):
            rd_B(bidx + w, work[w][0])
            for m in work[w][1]:
                if m not in a_loaded:
                    rd_A(m - m0, m); a_loaded.add(m)
        for w, (n, ms) in enumerate(work):
            for mi, m in enumerate(ms):
                c = (m + n - 7)//8
                a.wait_lgkm(("B", bidx + w), ("A", m))
                br = BFR + 4*((bidx + w) % NB)
                ar = AFR + 4*(m - m0)
                a(f"v_mfma_f32_16x16x32_bf16 v[{ACC+4*c}:{ACC+4*c+3}], v[{ar}:{ar+3}], v[{br}:{br+3}], v[{ACC+4*c}:{ACC+4*c+3}]")
                nmf += 1
                if nmf % mf_per_bar == 0:
                    bar()
                if mi == 0 and w + PB < len(work):
                    rd_B(bidx + w + PB, work[w + PB][0])
                    for m2 in work[w + PB][1]:
                        if m2 not in a_loaded:
                            rd_A(m2 - m0, m2); a_loaded.add(m2)
        bidx += len(work)
    if stamp:
        stamp_mid(a, 1)
    a("v_lshlrev_b32 v6, 16, v6")
    a("v_and_b32 v4, 15, v2")
    a("v_lshlrev_b32 v4, 5, v4")
    a("v_lshl_add_u32 v4, v7, 3, v4")
    a(f"v_sub_u32 v5, {UOFF + 4088 - 512*7}, v4")
    a("v_add_u32 v5, s59, v5")
    a("v_add_u32 v14, s59, v4")
    for c in range(8):
        a.lds(f"ds_read_b64 v[{32+2*c}:{33+2*c}], v5 offset:{512*(7-c)}", tag=("k", c))
    a("s_nop 7")
    a("s_nop 7")
    for c in range(8):
        a.wait_lgkm(("k", c))
        K = 32 + 2*c; A = ACC + 4*c; T = 64
        a(f"v_and_b32 v{T}, 0xffff0000, v{K+1}")
        a(f"v_lshlrev_b32 v{T+1}, 16, v{K+1}")
        a(f"v_and_b32 v{T+2}, 0xffff0000, v{K}")
        a(f"v_lshlrev_b32 v{T+3}, 16, v{K}")
        for r in range(4):
            a(f"v_mul_f32 v{T+r}, v{T+r}, v6")
        a(f"v_cvt_pk_bf16_f32 v{T+4}, v{T}, v{T+1}")
        a(f"v_cvt_pk_bf16_f32 v{T+5}, v{T+2}, v{T+3}")
        a(f"v_cvt_pk_bf16_f32 v{T+6}, v{A}, v{A+1}")
        a(f"v_cvt_pk_bf16_f32 v{T+7}, v{A+2}, v{A+3}")
        for p in range(2):
            a(f"v_lshlrev_b32 v{T}, 16, v{T+4+p}")
            a(f"v_and_b32 v{T+1}, 0xffff0000, v{T+4+p}")
            a(f"v_lshlrev_b32 v{T+2}, 16, v{T+6+p}")
            a(f"v_and_b32 v{T+3}, 0xffff0000, v{T+6+p}")
            a(f"v_add_f32 v{T}, v{T}, v{T+2}")
            a(f"v_add_f32 v{T+1}, v{T+1}, v{T+3}")
            a(f"v_cvt_pk_bf16_f32 v{T+8+p}, v{T}, v{T+1}")
        a.lds(f"ds_write_b64 v14, v[{T+8}:{T+9}] offset:{512*c}", tag="y")
    a.wait_all_lgkm()
    bar()
    a("v_subrev_u32 v15, 256, v0")
    a("v_lshlrev_b32 v4, 2, v15")
    a(f"v_add_u32 v4, {G2B}, v4")
    a(f"v_add_u32 v7, {2*WVB}, v4")
    for i in range(4):
        for ch in range(4):
            a.lds(f"ds_read_b32 v{32+4*i+ch}, v{4 if ch < 2 else 7} offset:{(ch%2)*WVB + i*1024}", tag=("t", i))
    a("s_mov_b32 s40, 0x05040100")
    a("s_mov_b32 s41, 0x07060302")
    a("s_lshl_b32 s42, s2, 14")
    a("v_lshlrev_b32 v5, 4, v15")
    a("v_add_u32 v5, s42, v5")
    for i in range(4):
        a.wait_lgkm(("t", i))
        r = 32 + 4*i; T = 64 + 4*i
        a(f"v_perm_b32 v{T}, v{r+1}, v{r}, s40")
        a(f"v_perm_b32 v{T+1}, v{r+3}, v{r+2}, s40")
        a(f"v_perm_b32 v{T+2}, v{r+1}, v{r}, s41")
        a(f"v_perm_b32 v{T+3}, v{r+3}, v{r+2}, s41")
        a(f"v_add_u32 v6, {i*4096}, v5")
        a(f"buffer_store_dwordx4 v[{T}:{T+3}], v6, s[16:19], 0 offen sc1")
    bar(); bar(); bar()
    a("s_waitcnt vmcnt(0)")
    srd(a, 40, 4, 4096, add=WS_FLAGS)
    a("s_lshl_b32 s56, s2, 2")
    a("s_add_u32 s56, s56, s33")
    a("s_lshl_b32 s56, s56, 2")
    a("v_mov_b32 v4, s56")
    a("v_mov_b32 v5, 1")
    a("v_cmp_eq_u32 vcc, 0, v2")
    a("s_and_saveexec_b64 s[62:63], vcc")
    a("buffer_store_dword v5, v4, s[40:43], 0 offen sc1")
    a("s_mov_b64 exec, s[62:63]")
    if stamp:
        a("s_memtime s[72:73]")
    print("conv barriers before pad:", nbar[0])
    while nbar[0] < 29:
        bar()
    if stamp:
        stamp_end(a, S_WV, 2)
    print("conv barriers:", nbar[0])
    assert nbar[0] <= 29
    a.label(f"{name}_end")
    a("s_endpgm")
    return a.text() + kernel_desc(name, 224, 96)
```

```python
from asmgen import *
from gen_common import *

NTOUCH = 140
PREP_GRID = 768 + NTOUCH
def gen_prep(name="prep_kernel", stamp=False):
    a = Asm()
    a.raw(kernel_header(name))
    a(f"s_cmp_ge_u32 s2, {PREP_GRID}")
    a("s_cbranch_scc1 L_prep_end")
    a(f"s_cmp_lt_u32 s2, {NTOUCH}")
    a("s_cbranch_scc1 L_prep_touch")
    a(f"s_sub_u32 s2, s2, {NTOUCH}")
    if stamp:
        stamp_begin(a); stamp_mid(a, 0); stamp_mid(a, 1)
    a("s_load_dwordx2 s[4:5], s[0:1], %d" % KA_Q)
    a("s_load_dwordx2 s[6:7], s[0:1], %d" % KA_WS)
    a("s_load_dwordx2 s[32:33], s[0:1], %d" % KA_K)
    a("s_load_dwordx2 s[34:35], s[0:1], %d" % KA_V)
    a("s_load_dwordx2 s[36:37], s[0:1], %d" % KA_SK)
    a("v_lshrrev_b32 v1, 6, v0")
    a("v_and_b32 v2, 63, v0")
    a("s_nop 0")
    a("v_readfirstlane_b32 s48, v1")
    a("s_waitcnt lgkmcnt(0)")
    a("s_cmp_ge_u32 s2, 512")
    a("s_cbranch_scc1 L_prep_kv")
    srd(a, 8, 4, S*D*2)
    srd(a, 12, 6, S*D*2, add=WS_XN)
    srd(a, 16, 6, S*8, add=WS_STATS)
    a("s_lshl_b32 s3, s2, 2")
    a("v_add_u32 v3, s3, v1")
    a("v_lshlrev_b32 v4, 11, v3")
    a("v_lshl_add_u32 v4, v2, 4, v4")
    a("buffer_load_dwordx4 v[8:11], v4, s[8:11], 0 offen")
    a("buffer_load_dwordx4 v[12:15], v4, s[8:11], 0 offen offset:1024")
    a("s_waitcnt vmcnt(0)")
    for i in range(8):
        a(f"v_lshlrev_b32 v{16+2*i}, 16, v{8+i}")
        a(f"v_and_b32 v{17+2*i}, 0xffff0000, v{8+i}")
    a("v_add_f32 v32, v16, v17")
    for i in range(2, 16):
        a(f"v_add_f32 v32, v32, v{16+i}")
    wave_reduce_add(a, 32, 33)
    a("v_mul_f32 v32, 0x3a800000, v32")
    a("v_sub_f32 v34, v16, v32")
    a("v_mul_f32 v35, v34, v34")
    for i in range(1, 16):
        a(f"v_sub_f32 v34, v{16+i}, v32")
        a(f"v_fmac_f32 v35, v34, v34")
    wave_reduce_add(a, 35, 33)
    a("v_mul_f32 v35, 0x3a800000, v35")
    a("v_cvt_pk_bf16_f32 v36, v32, v35")
    a("v_lshlrev_b32 v32, 16, v36")
    a("v_and_b32 v35, 0xffff0000, v36")
    a("v_add_f32 v35, 0x3727c5ac, v35")
    a("v_cvt_pk_bf16_f32 v36, v35, v35")
    a("v_lshlrev_b32 v35, 16, v36")
    a("v_sqrt_f32 v35, v35")
    a("s_nop 0")
    a("v_cvt_pk_bf16_f32 v36, v35, v35")
    a("v_lshlrev_b32 v35, 16, v36")
    a("v_rcp_f32 v37, v35")
    a("s_nop 0")
    for i in range(8):
        a(f"v_sub_f32 v38, v{16+2*i}, v32")
        a(f"v_sub_f32 v39, v{17+2*i}, v32")
        a(f"v_cvt_pk_bf16_f32 v38, v38, v39")
        a(f"v_lshlrev_b32 v39, 16, v38")
        a(f"v_and_b32 v38, 0xffff0000, v38")
        a(f"v_mul_f32 v39, v39, v37")
        a(f"v_mul_f32 v38, v38, v37")
        a(f"v_cvt_pk_bf16_f32 v{8+i}, v39, v38")
    a("buffer_store_dwordx4 v[8:11], v4, s[12:15], 0 offen")
    a("buffer_store_dwordx4 v[12:15], v4, s[12:15], 0 offen offset:1024")
    a("v_mov_b32 v40, v32")
    a("v_mov_b32 v41, v37")
    a("v_lshlrev_b32 v5, 3, v3")
    a("v_cmp_eq_u32 vcc, 0, v2")
    a("s_and_saveexec_b64 s[20:21], vcc")
    a("buffer_store_dwordx2 v[40:41], v5, s[16:19], 0 offen")
    if stamp:
        a("s_mov_b64 exec, -1")
        stamp_end(a, 48, 0, ws=6)
    a("s_endpgm")
    a.label("L_prep_kv")
    srd(a, 8, 32, S*D*2)
    srd(a, 12, 34, S*D*2)
    srd(a, 16, 36, D*4*2)
    srd(a, 20, 6, D*S*2, add=WS_KVT)
    a("s_sub_u32 s3, s2, 512")
    a("s_and_b32 s24, s3, 7")
    a("s_lshr_b32 s25, s3, 3")
    a("s_lshl_b32 s24, s24, 7")
    a("s_lshl_b32 s25, s25, 6")
    a("v_lshl_add_u32 v3, v2, 1, s24")
    a("v_lshl_add_u32 v4, v1, 4, s25")
    a("v_lshlrev_b32 v5, 3, v3")
    a("buffer_load_dwordx4 v[8:11], v5, s[16:19], 0 offen")
    a("v_lshlrev_b32 v6, 11, v4")
    a("v_lshl_add_u32 v6, v3, 1, v6")
    for r in range(19):
        off = (r - 3) * 2048
        a(f"v_add_u32 v7, {off & 0xffffffff:#x}, v6")
        a(f"buffer_load_dword v{16+r}, v7, s[8:11], 0 offen")
    for r in range(16):
        a(f"v_add_u32 v7, {r*2048:#x}, v6")
        a(f"buffer_load_dword v{36+r}, v7, s[12:15], 0 offen")
    a("s_waitcnt vmcnt(0)")
    a("v_lshlrev_b32 v52, 16, v8");  a("v_and_b32 v53, 0xffff0000, v8")
    a("v_lshlrev_b32 v54, 16, v9");  a("v_and_b32 v55, 0xffff0000, v9")
    a("v_lshlrev_b32 v56, 16, v10"); a("v_and_b32 v57, 0xffff0000, v10")
    a("v_lshlrev_b32 v58, 16, v11"); a("v_and_b32 v59, 0xffff0000, v11")
    for r in range(19):
        a(f"v_lshlrev_b32 v{64+r}, 16, v{16+r}")
        a(f"v_and_b32 v{84+r}, 0xffff0000, v{16+r}")
    for i in range(16):
        for (kb, wb, ob, sh) in ((64, 52, 104, 'lo'), (84, 56, 120, 'hi')):
            a(f"v_mul_f32 v60, v{kb+i}, v{wb+3}")
            a(f"v_fmac_f32 v60, v{kb+i+1}, v{wb+2}")
            a(f"v_fmac_f32 v60, v{kb+i+2}, v{wb+1}")
            a(f"v_fmac_f32 v60, v{kb+i+3}, v{wb+0}")
            a(f"v_cvt_pk_bf16_f32 v60, v60, v60")
            a(f"v_lshlrev_b32 v60, 16, v60")
            if sh == 'lo':
                a(f"v_lshlrev_b32 v61, 16, v{36+i}")
            else:
                a(f"v_and_b32 v61, 0xffff0000, v{36+i}")
            a(f"v_mul_f32 v{ob+i}, v60, v61")
    for i in range(8):
        a(f"v_cvt_pk_bf16_f32 v{16+i}, v{104+15-2*i}, v{104+14-2*i}")
        a(f"v_cvt_pk_bf16_f32 v{24+i}, v{120+15-2*i}, v{120+14-2*i}")
    a("v_sub_u32 v7, 2032, v4")
    a("v_lshlrev_b32 v7, 1, v7")
    a("v_lshl_add_u32 v7, v3, 12, v7")
    a("buffer_store_dwordx4 v[16:19], v7, s[20:23], 0 offen")
    a("buffer_store_dwordx4 v[20:23], v7, s[20:23], 0 offen offset:16")
    a("v_add_u32 v7, 4096, v7")
    a("buffer_store_dwordx4 v[24:27], v7, s[20:23], 0 offen")
    a("buffer_store_dwordx4 v[28:31], v7, s[20:23], 0 offen offset:16")
    if stamp:
        stamp_end(a, 48, 0, ws=6)
    a("s_endpgm")
    a.label("L_prep_touch")
    a("s_load_dwordx2 s[4:5], s[0:1], %d" % KA_W1)
    a("s_load_dwordx2 s[6:7], s[0:1], %d" % KA_W3)
    a("s_lshl_b32 s3, s2, 8")
    a("v_add_u32 v1, s3, v0")
    a("s_cmp_ge_u32 s2, 70")
    a("s_waitcnt lgkmcnt(0)")
    a("s_cselect_b32 s8, s6, s4")
    a("s_cselect_b32 s9, s7, s5")
    a("s_cselect_b32 s3, 17920, 0")
    a(f"s_mov_b32 s10, {D*F*2}")
    a("s_mov_b32 s11, 0x00020000")
    a("v_subrev_u32 v1, s3, v1")
    a("v_lshlrev_b32 v1, 7, v1")
    a("buffer_load_dword v2, v1, s[8:11], 0 offen")
    a.label("L_prep_end")
    a("s_endpgm")
    return a.text() + kernel_desc(name, 136, 96)
```

```python
import sys
from gen_common import *
import gen_k1a, gen_k2c
ref = open('parallel_sum__ssm_conv_h3__glu_gated_swiglu__prompt.s.ref').read()
hdr = []
for line in ref.splitlines():
    if line.startswith(';') and '@launch' not in line and 'Override launch' not in line and 'grid=ceil' not in line:
        hdr.append(line)
    elif not line.startswith(';'):
        break
def make(launches, body):
    out = "\n".join(hdr) + "\n"
    for (k, g, b, l) in launches:
        out += f"; @launch kernel={k} grid=({g},1,1) block=({b},1,1) lds={l}\n"
    out += '.amdgcn_target "amdgcn-amd-amdhsa--gfx950"\n' + body
    return out
def config(stamp=False, **kw):
    launches = [("k1_kernel", 256, 256, gen_k1a.LDS_BYTES), ("k2_kernel", 256, 512, gen_k2c.G2_LDS)]
    body = gen_k1a.gen_k1a(stamp=stamp, **kw.get("g1", {})) + gen_k2c.gen_k2c(stamp=stamp, **kw.get("k2", {}))
    return launches, body
if __name__ == "__main__":
    launches, body = config()
    dst = sys.argv[1] if len(sys.argv) > 1 else 'parallel_sum__ssm_conv_h3__glu_gated_swiglu__prompt.s'
    open(dst, 'w').write(make(launches, body))
    print("wrote", dst)
```

```python
from asmgen import *
from gen_common import *
CPY = 4160
UOFF = 4 * CPY
UB = 4608
WVB = UOFF + UB

def conv_tail(a, name, S_WV, s_ws=4, ldsbase=0, stamp=False):
    S_KS = 8; S_US = 12; S_YS = 16; S_DS = 20
    AFR = 64; BFR = 32; ACC = 192; NB = 8
    a(f"s_load_dwordx4 s[44:47], s[0:1], {KA_SSMK}")
    a("s_lshl_b32 s34, s2, 2")
    a(f"s_add_u32 s56, s34, s{S_WV}")
    a("s_lshl_b32 s57, s56, 12")
    a(f"s_mul_i32 s59, s{S_WV}, {WVB}")
    if ldsbase:
        a(f"s_add_u32 s59, s59, {ldsbase}")
    a("v_lshlrev_b32 v3, 4, v2")
    a(f"s_add_u32 s58, s57, {WS_KVT}")
    a(f"s_add_u32 s{S_US}, s{s_ws}, s58")
    a(f"s_addc_u32 s{S_US+1}, s{s_ws+1}, 0")
    a(f"s_mov_b32 s{S_US+2}, 4096")
    a(f"s_mov_b32 s{S_US+3}, 0x00020000")
    for i in range(4):
        a(f"s_add_u32 m0, s59, {UOFF + i*1024}")
        a(f"s_mov_b32 s60, {i*1024}")
        a.vmem(f"buffer_load_dwordx4 v3, s[{S_US}:{S_US+3}], s60 offen lds", tag="u")
    a("s_waitcnt lgkmcnt(0)")
    a(f"s_add_u32 s{S_KS}, s44, s57")
    a(f"s_addc_u32 s{S_KS+1}, s45, 0")
    a(f"s_mov_b32 s{S_KS+2}, 4096")
    a(f"s_mov_b32 s{S_KS+3}, 0x00020000")
    for rr in range(5):
        r = 32 + rr*8
        a(f"v_add_u32 v4, {(rr*1024 - 32) & 0xffffffff:#x}, v3")
        a(f"v_add_u32 v5, {(rr*1024 - 16) & 0xffffffff:#x}, v3")
        a.vmem(f"buffer_load_dwordx4 v[{r}:{r+3}], v4, s[{S_KS}:{S_KS+3}], 0 offen", tag=("h", rr))
        a.vmem(f"buffer_load_dwordx4 v[{r+4}:{r+7}], v5, s[{S_KS}:{S_KS+3}], 0 offen", tag=("h", rr))
    srd(a, S_YS, s_ws, S*D*2, add=WS_YQ)
    srd(a, S_DS, 46, D*2)
    a("s_lshl_b32 s57, s56, 1")
    a("v_mov_b32 v4, s57")
    a.vmem(f"buffer_load_ushort v6, v4, s[{S_DS}:{S_DS+3}], 0 offen", tag="D")
    a("v_mov_b32 v8, 0"); a("v_mov_b32 v9, 0"); a("v_mov_b32 v10, 0"); a("v_mov_b32 v11, 0")
    a(f"v_add_u32 v4, s59, v3")
    a("v_cmp_gt_u32 vcc, 32, v2")
    a("s_and_saveexec_b64 s[62:63], vcc")
    a.lds(f"ds_write_b128 v4, v[8:11] offset:{UOFF+4096}", tag="z")
    a("s_mov_b64 exec, s[62:63]")
    a("v_and_b32 v14, 15, v2")
    a("v_add_u32 v14, 1, v14")
    a("v_and_b32 v5, 3, v14")
    a(f"v_mul_u32_u24 v5, {CPY}, v5")
    a("v_lshrrev_b32 v14, 2, v14")
    a("v_lshl_add_u32 v5, v14, 3, v5")
    a("v_lshrrev_b32 v7, 4, v2")
    a("v_lshl_add_u32 v5, v7, 4, v5")
    a("v_add_u32 v12, s59, v5")
    a("v_and_b32 v14, 15, v2")
    a("v_lshlrev_b32 v14, 5, v14")
    a(f"v_sub_u32 v14, {UOFF+480}, v14")
    a("v_lshl_add_u32 v14, v7, 4, v14")
    a("v_add_u32 v13, s59, v14")
    for i in range(32):
        a(f"v_mov_b32 v{ACC+i}, 0")
    for rr in range(5):
        r = 32 + rr*8
        a.wait_vm(("h", rr))
        T = 72 + (rr % 2) * 16
        for i in range(5):
            a(f"v_alignbit_b32 v{T+i}, v{r+i+1}, v{r+i}, 16")
        if rr == 4:
            a("v_cmp_gt_u32 vcc, 4, v2")
            a("s_and_saveexec_b64 s[62:63], vcc")
        off = rr*1024
        for i in range(4):
            a(f"v_mov_b32 v{T+8+i}, v{r+1+i}")
            a(f"v_mov_b32 v{T+12+i}, v{T+1+i}")
        a.lds(f"ds_write_b128 v4, v[{r}:{r+3}] offset:{off}", tag="c")
        a.lds(f"ds_write_b128 v4, v[{T}:{T+3}] offset:{CPY+off}", tag="c")
        a.lds(f"ds_write_b128 v4, v[{T+8}:{T+11}] offset:{2*CPY+off}", tag="c")
        a.lds(f"ds_write_b128 v4, v[{T+12}:{T+15}] offset:{3*CPY+off}", tag="c")
        if rr == 4:
            a("s_mov_b64 exec, s[62:63]")
    a.wait_vm("u", "D")
    a.wait_all_lgkm()
    if stamp:
        pass
    def rd_A(slot, m):
        r = AFR + 4*slot
        a.lds(f"ds_read_b64 v[{r}:{r+1}], v12 offset:{64*m}", tag=("A", m))
        a.lds(f"ds_read_b64 v[{r+2}:{r+3}], v12 offset:{64*m+8}", tag=("A", m))
    def rd_B(idx, n):
        r = BFR + 4*(idx % NB)
        a.lds(f"ds_read_b128 v[{r}:{r+3}], v13 offset:{64*(63-n)}", tag=("B", idx))
    bidx = 0
    for ph in range(2):
        m0 = 32*ph
        ns = list(range(64)) if ph == 0 else list(range(32))
        work = []
        for n in ns:
            ms = [m for m in range(m0, m0+32) if (m + n) % 8 == 7 and m + n <= 63]
            if ms:
                work.append((n, ms))
        a_loaded = set()
        PB = 4
        for w in range(min(PB, len(work))):
            rd_B(bidx + w, work[w][0])
            for m in work[w][1]:
                if m not in a_loaded:
                    rd_A(m - m0, m); a_loaded.add(m)
        for w, (n, ms) in enumerate(work):
            for mi, m in enumerate(ms):
                c = (m + n - 7)//8
                a.wait_lgkm(("B", bidx + w), ("A", m))
                br = BFR + 4*((bidx + w) % NB)
                ar = AFR + 4*(m - m0)
                a(f"v_mfma_f32_16x16x32_bf16 v[{ACC+4*c}:{ACC+4*c+3}], v[{ar}:{ar+3}], v[{br}:{br+3}], v[{ACC+4*c}:{ACC+4*c+3}]")
                if mi == 0 and w + PB < len(work):
                    rd_B(bidx + w + PB, work[w + PB][0])
                    for m2 in work[w + PB][1]:
                        if m2 not in a_loaded:
                            rd_A(m2 - m0, m2); a_loaded.add(m2)
        bidx += len(work)
    a("v_lshlrev_b32 v6, 16, v6")
    a("v_and_b32 v4, 15, v2")
    a("v_lshlrev_b32 v4, 5, v4")
    a("v_lshl_add_u32 v4, v7, 3, v4")
    a(f"v_sub_u32 v5, {UOFF + 4088 - 512*7}, v4")
    a("v_add_u32 v5, s59, v5")
    a("v_add_u32 v14, s59, v4")
    for c in range(8):
        a.lds(f"ds_read_b64 v[{32+2*c}:{33+2*c}], v5 offset:{512*(7-c)}", tag=("k", c))
    a("s_nop 7")
    a("s_nop 7")
    for c in range(8):
        a.wait_lgkm(("k", c))
        K = 32 + 2*c; A = ACC + 4*c; T = 64 + (c % 2) * 16
        a(f"v_and_b32 v{T}, 0xffff0000, v{K+1}")
        a(f"v_lshlrev_b32 v{T+1}, 16, v{K+1}")
        a(f"v_and_b32 v{T+2}, 0xffff0000, v{K}")
        a(f"v_lshlrev_b32 v{T+3}, 16, v{K}")
        for r in range(4):
            a(f"v_mul_f32 v{T+r}, v{T+r}, v6")
        a(f"v_cvt_pk_bf16_f32 v{T+4}, v{T}, v{T+1}")
        a(f"v_cvt_pk_bf16_f32 v{T+5}, v{T+2}, v{T+3}")
        a(f"v_cvt_pk_bf16_f32 v{T+6}, v{A}, v{A+1}")
        a(f"v_cvt_pk_bf16_f32 v{T+7}, v{A+2}, v{A+3}")
        for p in range(2):
            a(f"v_lshlrev_b32 v{T}, 16, v{T+4+p}")
            a(f"v_and_b32 v{T+1}, 0xffff0000, v{T+4+p}")
            a(f"v_lshlrev_b32 v{T+2}, 16, v{T+6+p}")
            a(f"v_and_b32 v{T+3}, 0xffff0000, v{T+6+p}")
            a(f"v_add_f32 v{T}, v{T}, v{T+2}")
            a(f"v_add_f32 v{T+1}, v{T+1}, v{T+3}")
            a(f"v_cvt_pk_bf16_f32 v{T+8+p}, v{T}, v{T+1}")
        a.lds(f"ds_write_b64 v14, v[{T+8}:{T+9}] offset:{512*c}", tag="y")
    a.wait_all_lgkm()
    a("s_barrier")
    a("v_lshlrev_b32 v4, 2, v0")
    if ldsbase:
        a(f"v_add_u32 v4, {ldsbase}, v4")
    a(f"v_add_u32 v7, {2*WVB}, v4")
    for i in range(4):
        for ch in range(4):
            a.lds(f"ds_read_b32 v{32+4*i+ch}, v{4 if ch < 2 else 7} offset:{(ch%2)*WVB + i*1024}", tag=("t", i))
    a("s_mov_b32 s40, 0x05040100")
    a("s_mov_b32 s41, 0x07060302")
    a("s_lshl_b32 s42, s2, 14")
    a("v_lshlrev_b32 v5, 4, v0")
    a("v_add_u32 v5, s42, v5")
    for i in range(4):
        a.wait_lgkm(("t", i))
        r = 32 + 4*i; T = 64 + 4*i
        a(f"v_perm_b32 v{T}, v{r+1}, v{r}, s40")
        a(f"v_perm_b32 v{T+1}, v{r+3}, v{r+2}, s40")
        a(f"v_perm_b32 v{T+2}, v{r+1}, v{r}, s41")
        a(f"v_perm_b32 v{T+3}, v{r+3}, v{r+2}, s41")
        a(f"v_add_u32 v6, {i*4096}, v5")
        a(f"buffer_store_dwordx4 v[{T}:{T+3}], v6, s[16:19], 0 offen")


def conv_merged(a, S_WV, E, s_ws=4, ratio=None, stamp=False):
    AFR = 112; BFR = 32; ACC = 64; NB = 8
    a("s_waitcnt vmcnt(3) lgkmcnt(0)")
    a("s_barrier")
    a.vm = []; a.lgkm = []
    if stamp: a("s_memtime s[92:93]")
    a(f"s_mul_i32 s60, s{S_WV}, {WVB}")
    a("v_lshlrev_b32 v5, 4, v2")
    a("v_add_u32 v5, s60, v5")
    for i in range(4):
        a.lds(f"ds_write_b128 v5, a[{152+4*i}:{155+4*i}] offset:{UOFF + i*1024}", tag="u")
    a("v_mov_b32 v8, 0"); a("v_mov_b32 v9, 0"); a("v_mov_b32 v10, 0"); a("v_mov_b32 v11, 0")
    a("v_cmp_gt_u32 vcc, 32, v2")
    a("s_and_saveexec_b64 s[62:63], vcc")
    a.lds(f"ds_write_b128 v5, v[8:11] offset:{UOFF+4096}", tag="z")
    a("s_mov_b64 exec, s[62:63]")
    a("v_accvgpr_read_b32 v6, a168")
    for rr in range(5):
        W = 32 + (rr % 2) * 24
        T = W + 8
        for i in range(6):
            a(f"v_accvgpr_read_b32 v{W+i}, a{112+rr*8+i}")
        for i in range(5):
            a(f"v_alignbit_b32 v{T+i}, v{W+i+1}, v{W+i}, 16")
        for i in range(4):
            a(f"v_mov_b32 v{T+8+i}, v{W+1+i}")
            a(f"v_mov_b32 v{T+12+i}, v{T+1+i}")
        if rr == 4:
            a("v_cmp_gt_u32 vcc, 4, v2")
            a("s_and_saveexec_b64 s[62:63], vcc")
        off = rr*1024
        a.lds(f"ds_write_b128 v5, v[{W}:{W+3}] offset:{off}", tag="c")
        a.lds(f"ds_write_b128 v5, v[{T}:{T+3}] offset:{CPY+off}", tag="c")
        a.lds(f"ds_write_b128 v5, v[{T+8}:{T+11}] offset:{2*CPY+off}", tag="c")
        a.lds(f"ds_write_b128 v5, v[{T+12}:{T+15}] offset:{3*CPY+off}", tag="c")
        if rr == 4:
            a("s_mov_b64 exec, s[62:63]")
    a("v_and_b32 v14, 15, v2")
    a("v_add_u32 v14, 1, v14")
    a("v_and_b32 v15, 3, v14")
    a(f"v_mul_u32_u24 v15, {CPY}, v15")
    a("v_lshrrev_b32 v14, 2, v14")
    a("v_lshl_add_u32 v15, v14, 3, v15")
    a("v_lshrrev_b32 v7, 4, v2")
    a("v_lshl_add_u32 v15, v7, 4, v15")
    a("v_add_u32 v12, s60, v15")
    a("v_and_b32 v14, 15, v2")
    a("v_lshlrev_b32 v14, 5, v14")
    a(f"v_sub_u32 v14, {UOFF+480}, v14")
    a("v_lshl_add_u32 v14, v7, 4, v14")
    a("v_add_u32 v13, s60, v14")
    a.wait_all_lgkm()
    for i in range(32):
        a(f"v_mov_b32 v{ACC+i}, 0")
    if stamp: a("s_memtime s[94:95]")
    E = list(E)
    nE = len(E)
    state = {"mf": 0}
    def fill():
        state["mf"] += 1
        want = (nE * state["mf"]) // 280
        done = nE - len(E)
        while E and done < want:
            a(E.pop(0)); done += 1
    def rd_A(slot, m):
        r = AFR + 4*slot
        a.lds(f"ds_read_b64 a[{r}:{r+1}], v12 offset:{64*m}", tag=("A", m))
        a.lds(f"ds_read_b64 a[{r+2}:{r+3}], v12 offset:{64*m+8}", tag=("A", m))
    def rd_B(idx, n):
        r = BFR + 4*(idx % NB)
        a.lds(f"ds_read_b128 v[{r}:{r+3}], v13 offset:{64*(63-n)}", tag=("B", idx))
    bidx = 0
    for ph in range(2):
        m0 = 32*ph
        ns = list(range(64)) if ph == 0 else list(range(32))
        work = []
        for n in ns:
            ms = [m for m in range(m0, m0+32) if (m + n) % 8 == 7 and m + n <= 63]
            if ms:
                work.append((n, ms))
        a_loaded = set()
        PB = 4
        for w in range(min(PB, len(work))):
            rd_B(bidx + w, work[w][0])
            for m in work[w][1]:
                if m not in a_loaded:
                    rd_A(m - m0, m); a_loaded.add(m)
        for w, (n, ms) in enumerate(work):
            for mi, m in enumerate(ms):
                c = (m + n - 7)//8
                a.wait_lgkm(("B", bidx + w), ("A", m))
                br = BFR + 4*((bidx + w) % NB)
                ar = AFR + 4*(m - m0)
                a(f"v_mfma_f32_16x16x32_bf16 v[{ACC+4*c}:{ACC+4*c+3}], a[{ar}:{ar+3}], v[{br}:{br+3}], v[{ACC+4*c}:{ACC+4*c+3}]")
                if mi == 0 and w + PB < len(work):
                    rd_B(bidx + w + PB, work[w + PB][0])
                    for m2 in work[w + PB][1]:
                        if m2 not in a_loaded:
                            rd_A(m2 - m0, m2); a_loaded.add(m2)
                fill()
        bidx += len(work)
    while E:
        a(E.pop(0))
    if stamp: a("s_memtime s[96:97]")
    a("v_lshlrev_b32 v6, 16, v6")
    a("v_and_b32 v4, 15, v2")
    a("v_lshlrev_b32 v4, 5, v4")
    a("v_lshl_add_u32 v4, v7, 3, v4")
    a(f"v_sub_u32 v5, {UOFF + 4088 - 512*7}, v4")
    a("v_add_u32 v5, s60, v5")
    a("v_add_u32 v14, s60, v4")
    for c in range(8):
        a.lds(f"ds_read_b64 v[{32+2*c}:{33+2*c}], v5 offset:{512*(7-c)}", tag=("k", c))
    a("s_nop 7")
    for c in range(8):
        a.wait_lgkm(("k", c))
        K = 32 + 2*c; A = ACC + 4*c; T = 128 + (c % 2) * 16
        a(f"v_and_b32 v{T}, 0xffff0000, v{K+1}")
        a(f"v_lshlrev_b32 v{T+1}, 16, v{K+1}")
        a(f"v_and_b32 v{T+2}, 0xffff0000, v{K}")
        a(f"v_lshlrev_b32 v{T+3}, 16, v{K}")
        for r in range(4):
            a(f"v_mul_f32 v{T+r}, v{T+r}, v6")
        a(f"v_cvt_pk_bf16_f32 v{T+4}, v{T}, v{T+1}")
        a(f"v_cvt_pk_bf16_f32 v{T+5}, v{T+2}, v{T+3}")
        a(f"v_cvt_pk_bf16_f32 v{T+6}, v{A}, v{A+1}")
        a(f"v_cvt_pk_bf16_f32 v{T+7}, v{A+2}, v{A+3}")
        for p in range(2):
            a(f"v_lshlrev_b32 v{T}, 16, v{T+4+p}")
            a(f"v_and_b32 v{T+1}, 0xffff0000, v{T+4+p}")
            a(f"v_lshlrev_b32 v{T+2}, 16, v{T+6+p}")
            a(f"v_and_b32 v{T+3}, 0xffff0000, v{T+6+p}")
            a(f"v_add_f32 v{T}, v{T}, v{T+2}")
            a(f"v_add_f32 v{T+1}, v{T+1}, v{T+3}")
            a(f"v_cvt_pk_bf16_f32 v{T+8+p}, v{T}, v{T+1}")
        a.lds(f"ds_write_b64 v14, v[{T+8}:{T+9}] offset:{512*c}", tag="y")
    a.wait_all_lgkm()
    a("s_barrier")
    a("v_lshlrev_b32 v4, 2, v0")
    a(f"v_add_u32 v7, {2*WVB}, v4")
    for i in range(4):
        for ch in range(4):
            a.lds(f"ds_read_b32 v{32+4*i+ch}, v{4 if ch < 2 else 7} offset:{(ch%2)*WVB + i*1024}", tag=("t", i))
    srd(a, 16, s_ws, S*D*2, add=WS_YQ)
    a("s_mov_b32 s40, 0x05040100")
    a("s_mov_b32 s41, 0x07060302")
    a("s_lshl_b32 s42, s2, 14")
    a("v_lshlrev_b32 v5, 4, v0")
    a("v_add_u32 v5, s42, v5")
    for i in range(4):
        a.wait_lgkm(("t", i))
        r = 32 + 4*i; T = 64 + 4*i
        a(f"v_perm_b32 v{T}, v{r+1}, v{r}, s40")
        a(f"v_perm_b32 v{T+1}, v{r+3}, v{r+2}, s40")
        a(f"v_perm_b32 v{T+2}, v{r+1}, v{r}, s41")
        a(f"v_perm_b32 v{T+3}, v{r+3}, v{r+2}, s41")
        a(f"v_add_u32 v6, {i*4096}, v5")
        a(f"buffer_store_dwordx4 v[{T}:{T+3}], v6, s[16:19], 0 offen")
```

```python
from asmgen import *
from gen_common import *
import conv_tail

STG = 30720
XB = 16384
WB = 7168
NS = 5
LDS_BYTES = STG * NS

def gen_g1(name="gemm1_kernel", PD=6, stamp=False, nwg=256, touch="oob", no_dma=False, no_lds=False, dma_g0=0, pk=False, conv=True, merge=True):
    a = Asm()
    a.raw(kernel_header(name))
    AF = 32; BF = 88; GA = 128
    VA0, VA1, VAS, VB = 8, 9, 10, 11
    VDX = 12; VDW = 16; VT = 23; VTD = 25
    S_XSRD = 8; S_WSRD = [12, 16, 20, 24]; S_HSRD = 28
    S_WV = 32; S_XO = 33; S_WO = 34; S_SLOT = [36, 37, 38, 39]; S_XSLOT = [40, 41, 42, 43]; S_CNT = 35
    S_RT = 44; S_CT = 45; S_RD = 47; S_DM = 48; S_DELTA = 49
    S_T1 = 80; S_T3 = 84; S_TO = 88
    a(f"s_cmp_ge_u32 s2, {nwg}")
    a(f"s_cbranch_scc1 {name}_end")
    if stamp:
        stamp_begin(a)
    a(f"s_load_dwordx2 s[4:5], s[0:1], {KA_WS}")
    a(f"s_load_dwordx4 s[52:55], s[0:1], {KA_W1}")
    a("v_lshrrev_b32 v1, 6, v0")
    a("v_and_b32 v2, 63, v0")
    a("s_and_b32 s56, s2, 7")
    a(f"v_readfirstlane_b32 s{S_WV}, v1")
    a("s_lshr_b32 s57, s2, 3")
    a("s_and_b32 s58, s56, 1")
    a("s_lshl_b32 s58, s58, 2")
    a("s_and_b32 s59, s57, 3")
    a(f"s_add_u32 s{S_RT}, s58, s59")
    a("s_lshr_b32 s58, s56, 1")
    a("s_lshl_b32 s58, s58, 3")
    a("s_lshr_b32 s59, s57, 2")
    a(f"s_add_u32 s{S_CT}, s58, s59")
    a("v_lshrrev_b32 v3, 4, v2")
    a("v_sub_u32 v3, 0, v3")
    a("v_xor_b32 v3, v3, v2")
    a("v_and_b32 v3, 3, v3")
    a("v_lshrrev_b32 v4, 2, v2")
    a(f"s_lshl_b32 s56, s{S_RT}, 8")
    a(f"s_lshl_b32 s57, s{S_WV}, 6")
    a("s_add_u32 s56, s56, s57")
    a("v_add_u32 v4, s56, v4")
    a("v_lshlrev_b32 v4, 11, v4")
    a(f"v_lshl_add_u32 v{VDX}, v3, 4, v4")
    for ii in range(1, 4):
        a(f"v_add_u32 v{VDX+ii}, {ii*32768}, v{VDX}")
    for ii in range(4):
        a(f"s_lshl_b32 s{S_XSLOT[ii]}, s{S_WV}, 12")
        a(f"s_add_u32 s{S_XSLOT[ii]}, s{S_XSLOT[ii]}, {ii*1024}")
    a(f"s_lshl_b32 s56, s{S_WV}, 2")
    a(f"s_mul_i32 s57, s{S_WV}, 3")
    a("s_add_u32 s57, s57, 2")
    a(f"s_cmp_lt_u32 s{S_WV}, 2")
    a("s_cselect_b32 s56, s56, s57")
    a(f"s_mul_i32 s58, s{S_CT}, 224")
    a(f"s_and_b32 s59, s{S_CT}, 1")
    a("s_lshl_b32 s60, s59, 5")
    a("s_add_u32 s60, s60, s58")
    a("s_xor_b32 s59, s59, 1")
    a("s_mul_i32 s61, s59, 192")
    a("s_add_u32 s61, s61, s58")
    a("v_lshrrev_b32 v3, 4, v2")
    a("v_bfe_u32 v4, v2, 2, 2")
    a("v_and_b32 v5, 3, v2")
    a("v_and_b32 v6, 2, v3")
    a("v_lshlrev_b32 v6, 1, v6")
    a("v_and_b32 v7, 1, v3")
    a("v_add_u32 v6, v6, v7")
    a("v_and_b32 v7, 2, v5")
    a("v_add_u32 v6, v6, v7")
    a("v_lshl_add_u32 v6, v6, 2, v4")
    a("v_mul_u32_u24 v6, 0x1c00, v6")
    a("v_and_b32 v7, 1, v5")
    a("v_lshlrev_b32 v7, 4, v7")
    a("v_add3_u32 v22, v6, v7, s61")
    for i in range(4):
        a(f"s_add_u32 s57, s56, {i}")
        a("s_cmp_ge_u32 s57, 7")
        a(f"s_cselect_b32 s62, 7, 0")
        a(f"s_cselect_b32 s{S_SLOT[i]}, 1, 0")
        a("s_sub_u32 s62, s57, s62")
        a("s_lshl_b32 s63, s62, 2")
        a("v_add_u32 v6, s63, v3")
        a("v_mul_u32_u24 v7, 86, v6")
        a("v_lshrrev_b32 v7, 8, v7")
        a("v_mul_u32_u24 v20, 3, v7")
        a("v_sub_u32 v6, v6, v20")
        a("v_and_b32 v20, 2, v7")
        a("v_xor_b32 v20, v20, v5")
        a("v_lshlrev_b32 v20, 4, v20")
        a("v_lshl_add_u32 v20, v6, 6, v20")
        a("v_lshl_add_u32 v7, v7, 2, v4")
        a("v_mul_u32_u24 v7, 0x1c00, v7")
        a("v_add3_u32 v21, v7, v20, s60")
        a("s_cmp_eq_u32 s62, 6")
        a("s_cselect_b64 vcc, -1, 0")
        a(f"v_cndmask_b32 v{VDW+i}, v21, v22, vcc")
        if i == 0:
            a("s_waitcnt lgkmcnt(0)")
        a(f"s_cmp_eq_u32 s{S_SLOT[i]}, 1")
        a(f"s_cselect_b32 s{S_WSRD[i]}, s54, s52")
        a(f"s_cselect_b32 s{S_WSRD[i]+1}, s55, s53")
        a(f"s_mov_b32 s{S_WSRD[i]+2}, {D*F*2}")
        a(f"s_mov_b32 s{S_WSRD[i]+3}, 0x00020000")
        a(f"s_lshl_b32 s{S_SLOT[i]}, s57, 10")
        a(f"s_add_u32 s{S_SLOT[i]}, s{S_SLOT[i]}, {XB}")
    srd(a, S_XSRD, 4, S*D*2, add=WS_XN)
    a(f"s_mov_b32 s{S_XO}, 0")
    a(f"s_mov_b32 s{S_WO}, 0")
    a(f"s_mov_b32 s{S_DM}, 0")
    a(f"s_mov_b32 s{S_RD}, 0")
    if touch:
        srd(a, S_T1, 52, D*F*2)
        srd(a, S_T3, 54, D*F*2)
        a(f"s_lshl_b32 s56, s2, 2")
        a(f"s_add_u32 s56, s56, s{S_WV}")
        a("s_lshl_b32 s56, s56, 9")
        a(f"v_lshlrev_b32 v{VT}, 7, v2")
        a(f"v_add_u32 v{VT}, s56, v{VT}")
        if touch == "oob":
            a("v_mov_b32 v24, 0x80000000")
            a("v_cmp_gt_u32 vcc, 4, v2")
            a("s_nop 1")
            a(f"v_cndmask_b32 v{VT}, v24, v{VT}, vcc")
        a(f"s_mov_b32 s{S_TO}, {192*7168}")

    late = []
    L = late.append
    L("v_lshrrev_b32 v3, 4, v2")
    L("v_bfe_u32 v4, v2, 2, 2")
    L("v_and_b32 v5, 3, v2")
    L("v_lshlrev_b32 v6, 6, v4")
    L("v_lshl_add_u32 v6, v5, 3, v6")
    L("v_and_b32 v7, 1, v3")
    L("v_mul_u32_u24 v20, 1536, v3")
    L("v_add_u32 v20, v20, v6")
    L(f"v_lshl_add_u32 v{VA0}, v7, 5, v20")
    L("v_xor_b32 v21, 1, v7")
    L(f"v_lshl_add_u32 v{VA1}, v21, 5, v20")
    L("v_lshrrev_b32 v21, 1, v3")
    L("v_lshlrev_b32 v21, 9, v21")
    L("v_add_u32 v21, v21, v6")
    L(f"v_lshl_add_u32 v{VAS}, v7, 5, v21")
    L("v_lshrrev_b32 v6, 2, v2")
    L("v_sub_u32 v6, 0, v6")
    L("v_xor_b32 v6, v6, v3")
    L("v_and_b32 v6, 3, v6")
    L("v_and_b32 v7, 15, v2")
    L(f"s_lshl_b32 s56, s{S_WV}, 6")
    L("v_add_u32 v7, s56, v7")
    L("v_lshlrev_b32 v7, 6, v7")
    L(f"v_lshl_add_u32 v{VB}, v6, 4, v7")
    for i in range(112):
        L(f"v_mov_b32 v{GA+i}, 0")
    for i in range(112):
        L(f"v_accvgpr_write_b32 a{i}, 0")

    a(f"s_cmp_lt_u32 s{S_WV}, 2")
    a(f"s_cbranch_scc0 {name}_pathB")

    order = []
    for l in range(7):
        order.append((0, l)); order.append((1, l))
    def dma_m0(idx):
        s = S_XSLOT[idx] if idx < 4 else S_SLOT[idx - 4]
        return f"s_add_u32 m0, s{S_DM}, s{s}"
    def dma_ld(idx, tag):
        if idx < 4:
            a.vmem(f"buffer_load_dwordx4 v{VDX+idx}, s[{S_XSRD}:{S_XSRD+3}], s{S_XO} offen lds", tag=tag)
        else:
            i = idx - 4
            a.vmem(f"buffer_load_dwordx4 v{VDW+i}, s[{S_WSRD[i]}:{S_WSRD[i]+3}], s{S_WO} offen lds", tag=tag)
    adv_instrs = [f"s_add_u32 s{S_XO}, s{S_XO}, 64", f"s_add_u32 s{S_WO}, s{S_WO}, {32*7168}", f"s_add_u32 s{S_DM}, s{S_DM}, {STG}"]
    def dma_wrap():
        a(f"s_cmp_eq_u32 s{S_DM}, {STG*NS}")
        a(f"s_cselect_b32 s{S_DM}, 0, s{S_DM}")
    def do_touch(par):
        if not touch:
            return
        srdn = S_T1 if par == 0 else S_T3
        if touch == "exec":
            a("s_mov_b64 exec, 15")
        a.vmem(f"buffer_load_dword v{VTD}, v{VT}, s[{srdn}:{srdn+3}], s{S_TO} offen", tag=("t", 0))
        if touch == "exec":
            a("s_mov_b64 exec, -1")
    def touch_adv(par):
        if touch and par == 1:
            a(f"s_add_u32 s{S_TO}, s{S_TO}, {64*7168}")
    def rd_a1(ai, hf, tag):
        m, l = order[ai]
        Wm = XB + m*WB
        if l < 6:
            base = VA0 if (l & 1) == 0 else VA1
            imm = Wm + (hf*3 + (l >> 1))*256
        else:
            base = VAS
            imm = Wm + 6144 + hf*256
        a.lds(f"ds_read_b64_tr_b16 v[{AF+4*ai+2*hf}:{AF+4*ai+2*hf+1}], v{base} offset:{imm}", tag=tag)
    def rd_b(bs, bt, tag):
        r = BF + 16*bs + 4*bt
        a.lds(f"ds_read_b128 v[{r}:{r+3}], v{VB} offset:{bt*1024}", tag=tag)
    def acc(m, l, bt):
        i = (l*4 + bt)*4
        return f"v[{GA+i}:{GA+i+3}]" if m == 0 else f"a[{i}:{i+3}]"

    NAUX = 15
    def aux_loads():
        a(f"s_load_dwordx4 s[92:95], s[0:1], {KA_SSMK}")
        a("s_lshl_b32 s56, s2, 2")
        a(f"s_add_u32 s56, s56, s{S_WV}")
        a("s_lshl_b32 s57, s56, 12")
        a(f"s_add_u32 s58, s57, {WS_KVT}")
        a(f"s_add_u32 s96, s4, s58")
        a(f"s_addc_u32 s97, s5, 0")
        a(f"s_mov_b32 s98, 4096")
        a(f"s_mov_b32 s99, 0x00020000")
        a("v_lshlrev_b32 v26, 4, v2")
        for i in range(4):
            a(f"buffer_load_dwordx4 a[{152+4*i}:{155+4*i}], v26, s[96:99], 0 offen offset:{i*1024}")
        a("s_waitcnt lgkmcnt(0)")
        a("s_lshl_b32 s58, s56, 1")
        a(f"s_add_u32 s96, s92, s57")
        a(f"s_addc_u32 s97, s93, 0")
        for rr in range(5):
            r = 112 + rr*8
            a(f"v_add_u32 v27, {(rr*1024 - 32) & 0xffffffff:#x}, v26")
            a(f"v_add_u32 v28, {(rr*1024 - 16) & 0xffffffff:#x}, v26")
            a(f"buffer_load_dwordx4 a[{r}:{r+3}], v27, s[96:99], 0 offen")
            a(f"buffer_load_dwordx4 a[{r+4}:{r+7}], v28, s[96:99], 0 offen")
        a(f"s_mov_b32 s96, s94")
        a(f"s_mov_b32 s97, s95")
        a(f"s_mov_b32 s98, {D*2}")
        a("v_mov_b32 v27, s58")
        a("buffer_load_ushort a168, v27, s[96:99], 0 offen")
    def wait_first():
        n = a._need(a.vm, [("d", 0)])
        extra = 0
        a(f"s_waitcnt vmcnt({n + extra})")
        a.vm = a.vm[len(a.vm) - n:]
    def path(nslots, lbl):
        nd = 4 + nslots
        lt = list(late)
        per = (len(lt) + 4*nd - 1) // (4*nd)
        if conv and merge:
            aux_loads()
        for st in range(NS - 1):
            for i in range(nd):
                a(dma_m0(i))
                a("s_nop 0")
                dma_ld(i, ("d", st))
                for _ in range(per):
                    if lt:
                        a(lt.pop(0))
            for s_ in adv_instrs:
                a(s_)
            dma_wrap()
            do_touch(st % 2); touch_adv(st % 2)
        while lt:
            a(lt.pop(0))
        wait_first()
        a("s_barrier")
        for ai in range(PD):
            rd_a1(ai, 0, ("a", 0, ai)); rd_a1(ai, 1, ("a", 0, ai))
            if ai < 4:
                rd_b(0, ai, ("b", 0, ai))
        if stamp:
            stamp_mid(a, 0)
        a(f"s_mov_b32 s{S_CNT}, 16")
        a.label(f"{lbl}_loop")
        tt = [("t", 0)] if touch else []
        assert a.vm == tt + sum([[("d", k)]*nd + tt for k in (1, 2, 3)], []), a.vm
        entry_l = list(a.lgkm); entry_v = list(a.vm)
        for ph in range(2):
            a.wait_vm(("d", ph + 1))
            a("s_barrier")
            gaps = [[] for _ in range(56)]
            for g in range(14):
                ga = g + PD
                tgt = (ga, ph) if ga < 14 else (ga - 14, 1 - ph)
                if not no_lds:
                    gaps[4*g + 0].append(lambda t=tgt: rd_a1(t[0], 0, ("a", t[1], t[0])))
                    gaps[4*g + 1].append(lambda t=tgt: rd_a1(t[0], 1, ("a", t[1], t[0])))
                    gb = g - (14 - PD)
                    if 0 <= gb < 4:
                        gaps[4*g + 2].append(lambda gb=gb: rd_b(1 - ph, gb, ("b", 1 - ph, gb)))
            for i in range(nd):
                g = dma_g0 + i
                gaps[4*g + 2].append(lambda i=i: a(dma_m0(i)))
                if not no_dma:
                    gaps[4*g + 3].append(lambda i=i: dma_ld(i, ("d", ph + 4)))
            gl = dma_g0 + nd - 1
            gaps[4*gl + 4].append(lambda: a(adv_instrs[0]))
            gaps[4*gl + 5].append(lambda: a(adv_instrs[1]))
            gaps[4*gl + 6].append(lambda: a(adv_instrs[2]))
            gaps[4*gl + 7].append(dma_wrap)
            if not no_dma:
                gaps[4*gl + 8].append(lambda: do_touch(ph))
            gaps[4*gl + 9].append(lambda: touch_adv(ph))
            g = 14 - PD - 1
            def rd_adv1():
                a(f"s_add_u32 s{S_DELTA}, s{S_RD}, {STG}")
                a(f"s_cmp_eq_u32 s{S_DELTA}, {STG*NS}")
                a(f"s_cselect_b32 s62, 0, s{S_DELTA}")
            def rd_adv2():
                a(f"s_sub_u32 s{S_DELTA}, s62, s{S_RD}")
                a(f"s_mov_b32 s{S_RD}, s62")
            gaps[4*g - 2].append(rd_adv1)
            gaps[4*g - 1].append(rd_adv2)
            gaps[4*g + 1].append(lambda: a(f"v_add_u32 v{VA0}, s{S_DELTA}, v{VA0}"))
            gaps[4*g + 2].append(lambda: a(f"v_add_u32 v{VA1}, s{S_DELTA}, v{VA1}"))
            gaps[4*g + 2].append(lambda: a(f"v_add_u32 v{VAS}, s{S_DELTA}, v{VAS}"))
            gaps[4*g + 3].append(lambda: a(f"v_add_u32 v{VB}, s{S_DELTA}, v{VB}"))
            for g in range(14):
                m, l = order[g]
                tags = [("a", ph, g)]
                if g == 0:
                    tags += [("b", ph, bt) for bt in range(4)]
                a.wait_lgkm(*tags)
                for bt in range(4):
                    r = BF + 16*ph + 4*bt
                    a(f"v_mfma_f32_16x16x32_bf16 {acc(m,l,bt)}, v[{AF+4*g}:{AF+4*g+3}], v[{r}:{r+3}], {acc(m,l,bt)}")
                    for f in gaps[4*g + bt]:
                        f()
                if no_lds:
                    a.lgkm = []
        if not (no_dma or no_lds):
            assert a.lgkm == entry_l, (a.lgkm, entry_l)
            assert [(t, k - 2 if t == "d" else k) for (t, k) in a.vm] == entry_v, (a.vm, entry_v)
        a(f"s_sub_u32 s{S_CNT}, s{S_CNT}, 1")
        a(f"s_cmp_lg_u32 s{S_CNT}, 0")
        a(f"s_cbranch_scc1 {lbl}_loop")
        a.lgkm = []; a.vm = []

    path(4, f"{name}_A")
    a(f"s_branch {name}_epi")
    a.label(f"{name}_pathB")
    path(3, f"{name}_B")
    a.label(f"{name}_epi")
    if stamp:
        stamp_mid(a, 1)
    a(f"s_load_dwordx2 s[54:55], s[0:1], {KA_W2}")
    a(f"s_load_dwordx2 s[56:57], s[0:1], {KA_SSMK}")
    srd(a, 80, 4, 4096, add=WS_FLAGS)
    srd(a, S_HSRD, 4, S*F*2, add=WS_H)
    a("s_lshl_b32 s58, s2, 4")
    a("v_lshlrev_b32 v23, 2, v0")
    a("v_add_u32 v23, s58, v23")
    a("v_mov_b32 v24, 0x80000000")
    a("v_cmp_gt_u32 vcc, 4, v0")
    a("v_mov_b32 v28, 0")
    a("s_nop 0")
    a("v_cndmask_b32 v23, v24, v23, vcc")
    a("buffer_store_dword v28, v23, s[80:83], 0 offen")
    a(f"s_lshl_b32 s58, s2, 2")
    a(f"s_add_u32 s58, s58, s{S_WV}")
    a("s_mul_i32 s59, s58, 56")
    a("v_add_u32 v23, s59, v2")
    a("v_lshlrev_b32 v23, 7, v23")
    a("v_cmp_gt_u32 vcc, 56, v2")
    a("s_waitcnt lgkmcnt(0)")
    a("v_cndmask_b32 v23, v24, v23, vcc")
    srd(a, 80, 54, F*D*2)
    srd(a, 84, 56, D*S*2)
    a("buffer_load_dword v26, v23, s[80:83], 0 offen")
    a("s_lshl_b32 s59, s58, 5")
    a("v_add_u32 v23, s59, v2")
    a("v_lshlrev_b32 v23, 7, v23")
    a("v_cmp_gt_u32 vcc, 32, v2")
    a("s_nop 1")
    a("v_cndmask_b32 v23, v24, v23, vcc")
    a("buffer_load_dword v27, v23, s[84:87], 0 offen")
    a(f"s_lshl_b32 s54, s{S_RT}, 4")
    a(f"s_lshl_b32 s55, s{S_WV}, 2")
    a("s_add_u32 s54, s54, s55")
    a("s_mul_i32 s54, s54, 112")
    a(f"s_mul_i32 s58, s{S_CT}, 224")
    a(f"s_and_b32 s59, s{S_CT}, 1")
    a("s_lshl_b32 s60, s59, 5")
    a("s_add_u32 s60, s60, s58")
    a("s_lshr_b32 s60, s60, 6")
    a("s_xor_b32 s59, s59, 1")
    a("s_mul_i32 s61, s59, 192")
    a("s_add_u32 s61, s61, s58")
    a("s_lshr_b32 s55, s61, 6")
    a("s_bfe_u32 s61, s61, 0x10005")
    a("s_lshl_b32 s61, s61, 3")
    a("s_add_u32 s60, s60, s54")
    a("s_lshl_b32 s60, s60, 10")
    a("s_add_u32 s55, s55, s54")
    a("s_lshl_b32 s55, s55, 10")
    a("s_add_u32 s55, s55, s61")
    a("v_lshlrev_b32 v3, 4, v2")
    a("v_add_u32 v4, s55, v3")
    a("v_add_u32 v3, s60, v3")
    a("s_mov_b32 s56, 0xbfb8aa3b")
    a("s_mov_b32 s57, 0xbfb8aa3b")
    a("s_mov_b32 s58, 1.0")
    a("s_mov_b32 s59, 1.0")
    E = []
    def e(x): E.append(x)
    T0 = 96 if (conv and merge) else 32
    def hcalc(l, bt, T, O):
        G = GA + (l*4 + bt)*4
        U = (l*4 + bt)*4
        for r in range(4):
            e(f"v_accvgpr_read_b32 v{T+4+r}, a{U+r}")
        if pk:
            for r in (0, 2):
                e(f"v_pk_mul_f32 v[{T+r}:{T+r+1}], v[{G+r}:{G+r+1}], s[56:57]")
        else:
            for r in range(4):
                e(f"v_mul_f32 v{T+r}, s56, v{G+r}")
        for r in range(4):
            e(f"v_exp_f32 v{T+r}, v{T+r}")
        if pk:
            for r in (0, 2):
                e(f"v_pk_mul_f32 v[{T+4+r}:{T+5+r}], v[{T+4+r}:{T+5+r}], v[{G+r}:{G+r+1}]")
            for r in (0, 2):
                e(f"v_pk_add_f32 v[{T+r}:{T+r+1}], v[{T+r}:{T+r+1}], s[58:59]")
        else:
            for r in range(4):
                e(f"v_mul_f32 v{T+4+r}, v{T+4+r}, v{G+r}")
            for r in range(4):
                e(f"v_add_f32 v{T+r}, 1.0, v{T+r}")
        for r in range(4):
            e(f"v_rcp_f32 v{T+r}, v{T+r}")
        if pk:
            e("s_nop 0")
            for r in (0, 2):
                e(f"v_pk_mul_f32 v[{T+4+r}:{T+5+r}], v[{T+4+r}:{T+5+r}], v[{T+r}:{T+r+1}]")
        else:
            for r in range(4):
                e(f"v_mul_f32 v{T+4+r}, v{T+4+r}, v{T+r}")
        e(f"v_cvt_pk_bf16_f32 v{O}, v{T+4}, v{T+5}")
        e(f"v_cvt_pk_bf16_f32 v{O+1}, v{T+6}, v{T+7}")
    k = 0
    for bt in range(4):
        for p in range(3):
            O = T0 + 16 + (k % 2) * 4
            hcalc(2*p, bt, T0, O)
            hcalc(2*p+1, bt, T0 + 8, O + 2)
            e(f"buffer_store_dwordx4 v[{O}:{O+3}], v3, s[{S_HSRD}:{S_HSRD+3}], 0 offen offset:{p*1024}")
            k += 1
        O = T0 + 24
        hcalc(6, bt, T0, O)
        e(f"buffer_store_dwordx2 v[{O}:{O+1}], v4, s[{S_HSRD}:{S_HSRD+3}], 0 offen")
        if bt < 3:
            e(f"v_add_u32 v3, {112*1024}, v3")
            e(f"v_add_u32 v4, {112*1024}, v4")
    if conv and merge:
        conv_tail.conv_merged(a, S_WV, E, stamp=stamp)
    else:
        for x in E:
            a(x)
    if conv and not merge:
        a("s_waitcnt vmcnt(0) lgkmcnt(0)")
        a("s_barrier")
        a.vm = []; a.lgkm = []
        conv_tail.conv_tail(a, name, S_WV)
    if stamp:
        if conv and merge:
            a("s_waitcnt lgkmcnt(0)")
            a("s_sub_u32 s96, s96, s94")
            a("s_sub_u32 s94, s94, s92")
            a("s_sub_u32 s92, s92, s70")
        stamp_end(a, S_WV, 1)
        if conv and merge:
            a("v_mov_b32 v8, s92"); a("v_mov_b32 v9, s94"); a("v_mov_b32 v10, s96")
            a("buffer_store_dwordx3 v[8:10], v5, s[76:79], 0 offen offset:20") if False else None
            a("v_mov_b32 v12, s92"); a("v_mov_b32 v13, s94")
            a("buffer_store_dwordx2 v[12:13], v5, s[76:79], 0 offen offset:24")
            a("v_mov_b32 v14, s96")
            a("buffer_store_dword v14, v5, s[76:79], 0 offen offset:20")
    a.label(f"{name}_end")
    a("s_endpgm")
    return a.text() + kernel_desc(name, (240 + 240) if (conv and merge) else (240 + 112), 102, accum=240)
```

```python
from asmgen import *
from gen_common import *

def params(SPS):
    STG2 = SPS * 32 * 128
    NS2 = 65536 // STG2
    return STG2, NS2
G2B = 65536
EPB = 12288
CNT = G2B + 4 * EPB
G2_LDS = CNT + 64

def gen_g2(name="g2_kernel", SPS=4, PH=8, stamp=False, nwg=256, lnfold=False):
    STG2, NS2 = params(SPS)
    LA = NS2 - 1
    NI = SPS
    a = Asm()
    a.raw(kernel_header(name))
    S_WV = 32
    a(f"s_cmp_ge_u32 s2, {nwg}")
    a(f"s_cbranch_scc1 {name}_end")
    if stamp:
        stamp_begin(a)
    a(f"s_load_dwordx2 s[4:5], s[0:1], {KA_WS}")
    a(f"s_load_dwordx4 s[52:55], s[0:1], {KA_W2}")
    a(f"s_load_dwordx2 s[50:51], s[0:1], {KA_Q}")
    a("v_lshrrev_b32 v1, 6, v0")
    a("v_and_b32 v2, 63, v0")
    a(f"v_mov_b32 v3, {CNT}")
    a(f"v_readfirstlane_b32 s{S_WV}, v1")
    a("v_mov_b32 v8, 0"); a("v_mov_b32 v9, 0")
    a("ds_write_b64 v3, v[8:9]")
    S_RT = 36; S_CT = 37
    a("s_and_b32 s56, s2, 7")
    a("s_lshr_b32 s57, s2, 3")
    a("s_and_b32 s58, s56, 3")
    a("s_lshl_b32 s58, s58, 2")
    a("s_and_b32 s59, s57, 3")
    a(f"s_add_u32 s{S_RT}, s58, s59")
    a("s_lshr_b32 s58, s56, 2")
    a("s_lshl_b32 s58, s58, 3")
    a("s_lshr_b32 s59, s57, 2")
    a(f"s_add_u32 s{S_CT}, s58, s59")
    a(f"s_cmp_ge_u32 s{S_WV}, 4")
    a(f"s_cbranch_scc1 {name}_help")
    HF = 64; AF = 32; ACC = 192; EP = 64
    VH0, VH1 = 8, 9
    VA = [10, 11, 12, 13]
    VD = 14
    S_HSRD = 8; S_WSRD = 12; S_OSRD = 16
    S_HO = 33; S_WO = 34; S_CNT = 35; S_DM = 38; S_SLOT = 39
    a("v_lshrrev_b32 v3, 3, v2")
    a("v_bfe_u32 v4, v2, 1, 2")
    a("v_bfe_u32 v5, v2, 4, 2")
    a("v_xor_b32 v4, v4, v5")
    a("v_and_b32 v5, 1, v2")
    a("v_lshl_add_u32 v4, v4, 1, v5")
    a("v_lshlrev_b32 v4, 4, v4")
    a(f"s_mul_i32 s56, s{S_WV}, {8*NI}")
    a("v_add_u32 v3, s56, v3")
    a("v_lshlrev_b32 v3, 11, v3")
    a(f"s_lshl_b32 s56, s{S_CT}, 7")
    a(f"v_add3_u32 v{VD}, v3, v4, s56")
    for ii in range(1, NI):
        a(f"v_add_u32 v{VD+ii}, {ii*8*2048}, v{VD}")
    a(f"s_mul_i32 s{S_SLOT}, s{S_WV}, {NI*1024}")
    a(f"s_lshl_b32 s56, s{S_RT}, 3")
    a(f"s_lshl_b32 s57, s{S_WV}, 1")
    a("s_add_u32 s56, s56, s57")
    a(f"s_mul_i32 s56, s56, {112*1024}")
    a("v_lshlrev_b32 v3, 4, v2")
    a(f"v_add_u32 v{VH0}, s56, v3")
    a(f"v_add_u32 v{VH1}, {112*1024}, v{VH0}")
    a(f"s_mov_b32 s{S_HO}, 0")
    a(f"s_mov_b32 s{S_WO}, 0")
    a(f"s_mov_b32 s{S_DM}, 0")
    a("s_waitcnt lgkmcnt(0)")
    srd(a, S_HSRD, 4, S*F*2, add=WS_H)
    srd(a, S_WSRD, 52, F*D*2)

    def dma(ii, tag):
        a(f"s_add_u32 m0, s{S_DM}, s{S_SLOT}")
        if ii:
            a(f"s_add_u32 m0, m0, {ii*1024}")
        else:
            a("s_nop 0")
        a.vmem(f"buffer_load_dwordx4 v{VD+ii}, s[{S_WSRD}:{S_WSRD+3}], s{S_WO} offen lds", tag=tag)
    def dma_adv():
        a(f"s_add_u32 s{S_WO}, s{S_WO}, {SPS*32*2048}")
        a(f"s_add_u32 s{S_DM}, s{S_DM}, {STG2}")
        a(f"s_and_b32 s{S_DM}, s{S_DM}, {STG2*NS2-1}")
    def ld_h(slot, tag):
        for bt in range(2):
            r = HF + slot*8 + bt*4
            a.vmem(f"buffer_load_dwordx4 v[{r}:{r+3}], v{VH0+bt}, s[{S_HSRD}:{S_HSRD+3}], s{S_HO} offen", tag=tag)
        a(f"s_add_u32 s{S_HO}, s{S_HO}, 1024")
    def rd_a(aset, pos, uu, dt, tag):
        for hf in range(2):
            imm = pos*STG2 + (32*uu + 16*hf)*128
            r = AF + aset*16 + dt*4 + 2*hf
            a.lds(f"ds_read_b64_tr_b16 v[{r}:{r+1}], v{VA[dt]} offset:{imm}", tag=tag)
    half = SPS // 2
    def dma_plan(uu):
        if uu < half:
            return []
        per = NI // (SPS - half)
        base = (uu - half) * per
        dts = [0, 2] if per == 2 else [1]
        return [(dts[j], base + j) for j in range(per)]
    for t in range(-max(PH, LA*SPS), 0):
        T = t // SPS; uu = t % SPS
        for (dt, ii) in dma_plan(uu):
            st = T + LA
            if st >= 0:
                dma(ii, ("d", st % NS2))
                if ii == NI - 1:
                    dma_adv()
        if t + PH >= 0:
            ld_h(t + PH, ("h", t + PH))
    a("v_lshrrev_b32 v3, 4, v2")
    a("v_bfe_u32 v4, v2, 2, 2")
    a("v_and_b32 v5, 3, v2")
    a("v_lshl_add_u32 v3, v3, 2, v4")
    a("v_bfe_u32 v4, v3, 1, 2")
    a("v_lshlrev_b32 v3, 7, v3")
    a("v_lshl_add_u32 v3, v5, 3, v3")
    for dt in range(4):
        a(f"v_xor_b32 v5, {dt}, v4")
        a(f"v_lshl_add_u32 v{VA[dt]}, v5, 5, v3")
    for i in range(32):
        a(f"v_mov_b32 v{ACC+i}, 0")
    srd(a, S_OSRD, 54, S*D*2)
    a("v_lshrrev_b32 v3, 4, v2")
    a("v_and_b32 v4, 1, v3")
    a("v_lshlrev_b32 v4, 4, v4")
    a("v_lshrrev_b32 v5, 1, v3")
    a("v_lshl_add_u32 v4, v5, 3, v4")
    a(f"s_lshl_b32 s56, s{S_CT}, 6")
    a("v_add_u32 v7, s56, v4")
    a(f"s_lshl_b32 s56, s{S_RT}, 7")
    a(f"s_lshl_b32 s57, s{S_WV}, 5")
    a("s_add_u32 s56, s56, s57")
    a("v_and_b32 v5, 15, v2")
    a("v_add_u32 v6, s56, v5")
    a("v_lshlrev_b32 v6, 11, v6")
    a("v_lshl_add_u32 v6, v7, 1, v6")
    a(f"s_mul_i32 s56, s{S_WV}, {EPB}")
    a(f"s_add_u32 s56, s56, {G2B}")
    a("v_lshlrev_b32 v18, 7, v5")
    a("v_lshl_add_u32 v18, v4, 1, v18")
    a("v_add_u32 v18, s56, v18")
    a("v_lshlrev_b32 v19, 6, v4")
    a("v_lshl_add_u32 v19, v5, 3, v19")
    a("v_add_u32 v19, s56, v19")
    a(f"v_mov_b32 v20, {CNT}")
    a("v_mov_b32 v21, 1")
    a("s_mov_b32 s61, 0")
    a.wait_vm(("d", 0))
    a("s_waitcnt lgkmcnt(0)")
    a("s_barrier")
    for dt in range(4):
        rd_a(0, 0, 0, dt, ("a", 0, dt))
    if stamp:
        stamp_mid(a, 0)
    a(f"s_mov_b32 s{S_CNT}, 7")
    a.label(f"{name}_loop")
    entry_l = list(a.lgkm); entry_v = list(a.vm)
    step = 0
    chk = 1 if SPS == 2 else 2
    for pos in range(NS2):
        nxt = (pos + 1) % NS2
        a.wait_vm(("d", nxt))
        a("s_mov_b64 exec, 1")
        a.lds("ds_add_u32 v20, v21", tag=("s", pos))
        a("s_mov_b64 exec, -1")
        a("s_add_u32 s61, s61, 4")
        for uu in range(SPS):
            if uu == chk - 1:
                a.lds("ds_read_b32 v22, v20", tag=("c", pos))
            if uu == chk:
                lbl = f"{name}_sp{pos}"
                a.wait_lgkm(("c", pos))
                a("v_readfirstlane_b32 s62, v22")
                a("s_nop 3")
                a("s_cmp_ge_u32 s62, s61")
                a(f"s_cbranch_scc1 {lbl}_ok")
                a.label(lbl)
                a("ds_read_b32 v22, v20")
                a("s_waitcnt lgkmcnt(0)")
                a("v_readfirstlane_b32 s62, v22")
                a("s_nop 3")
                a("s_cmp_ge_u32 s62, s61")
                a(f"s_cbranch_scc0 {lbl}")
                a.label(f"{lbl}_ok")
            aset = step % 2
            slot = step % PH
            npos, nuu = (pos, uu + 1) if uu < SPS - 1 else (nxt, 0)
            a.wait_vm(("h", slot))
            plan = dict(dma_plan(uu))
            for dt in range(4):
                a.wait_lgkm(("a", aset, dt))
                for bt in range(2):
                    r = HF + slot*8 + bt*4
                    c = ACC + (dt*2 + bt)*4
                    a(f"v_mfma_f32_16x16x32_bf16 v[{c}:{c+3}], v[{AF+aset*16+dt*4}:{AF+aset*16+dt*4+3}], v[{r}:{r+3}], v[{c}:{c+3}]")
                    if bt == 0:
                        rd_a(1 - aset, npos, nuu, dt, ("a", 1 - aset, dt))
                if dt in plan:
                    ii = plan[dt]
                    dma(ii, ("d", (pos + LA) % NS2))
                    if ii == NI - 1:
                        dma_adv()
            ld_h(slot, ("h", slot))
            step += 1
    assert a.lgkm == entry_l, (a.lgkm, entry_l)
    assert a.vm == entry_v, (a.vm, entry_v)
    a(f"s_sub_u32 s{S_CNT}, s{S_CNT}, 1")
    a(f"s_cmp_lg_u32 s{S_CNT}, 0")
    a(f"s_cbranch_scc1 {name}_loop")
    a.lgkm = []; a.vm = []
    if stamp:
        stamp_mid(a, 1)
    a.label(f"{name}_ho")
    a("ds_read_b32 v22, v20 offset:4")
    a("s_waitcnt lgkmcnt(0)")
    a("v_readfirstlane_b32 s62, v22")
    a("s_nop 3")
    a("s_cmp_ge_u32 s62, 4")
    a(f"s_cbranch_scc0 {name}_ho")
    AX = 32
    a("s_waitcnt vmcnt(0)")
    LX = EP
    k = 0
    for bt in range(2):
        for dp in range(2):
            r = LX + k*12
            a.lds(f"ds_read_b128 v[{r}:{r+3}], v18 offset:{bt*2048 + dp*64}", tag=("e", k))
            a.lds(f"ds_read_b128 v[{r+4}:{r+7}], v18 offset:{4096 + bt*2048 + dp*64}", tag=("e", k))
            a.lds(f"ds_read_b64 v[{r+8}:{r+9}], v19 offset:{8192 + dp*8*256 + bt*128}", tag=("e", k))
            a.lds(f"ds_read_b64 v[{r+10}:{r+11}], v19 offset:{8192 + dp*8*256 + 256 + bt*128}", tag=("e", k))
            k += 1
    k = 0
    P = 128
    for bt in range(2):
        for dp in range(2):
            cX = ACC + ((2*dp)*2 + bt)*4
            cY = ACC + ((2*dp+1)*2 + bt)*4
            PP = P + (k % 2) * 16
            a(f"v_cvt_pk_bf16_f32 v{PP}, v{cX}, v{cX+1}")
            a(f"v_cvt_pk_bf16_f32 v{PP+1}, v{cX+2}, v{cX+3}")
            a(f"v_cvt_pk_bf16_f32 v{PP+2}, v{cY}, v{cY+1}")
            a(f"v_cvt_pk_bf16_f32 v{PP+3}, v{cY+2}, v{cY+3}")
            a("s_nop 1")
            a(f"v_permlane16_swap_b32 v{PP}, v{PP+2}")
            a(f"v_permlane16_swap_b32 v{PP+1}, v{PP+3}")
            r = LX + k*12
            a.wait_lgkm(("e", k))
            for w in range(4):
                xr, nr, yr, br = r + w, r + 4 + w, r + 8 + w, PP + w
                T = 160
                for half_ in range(2):
                    def unp(dst, src):
                        if half_ == 0:
                            a(f"v_lshlrev_b32 v{dst}, 16, v{src}")
                        else:
                            a(f"v_and_b32 v{dst}, 0xffff0000, v{src}")
                    unp(T + 0 + 4*half_, nr); unp(T + 1 + 4*half_, yr); unp(T + 2 + 4*half_, xr); unp(T + 3 + 4*half_, br)
                a(f"v_mul_f32 v{T}, v{T}, v{T+1}")
                a(f"v_mul_f32 v{T+4}, v{T+4}, v{T+5}")
                a(f"v_cvt_pk_bf16_f32 v{T}, v{T}, v{T+4}")
                a(f"v_and_b32 v{T+4}, 0xffff0000, v{T}")
                a(f"v_lshlrev_b32 v{T}, 16, v{T}")
                a(f"v_add_f32 v{T}, v{T}, v{T+2}")
                a(f"v_add_f32 v{T+4}, v{T+4}, v{T+6}")
                a(f"v_cvt_pk_bf16_f32 v{T}, v{T}, v{T+4}")
                a(f"v_and_b32 v{T+4}, 0xffff0000, v{T}")
                a(f"v_lshlrev_b32 v{T}, 16, v{T}")
                a(f"v_add_f32 v{T}, v{T}, v{T+3}")
                a(f"v_add_f32 v{T+4}, v{T+4}, v{T+7}")
                a(f"v_cvt_pk_bf16_f32 v{PP+4+w}, v{T}, v{T+4}")
            a(f"v_add_u32 v3, {bt*16*2048 + dp*64}, v6")
            a(f"buffer_store_dwordx4 v[{PP+4}:{PP+7}], v3, s[{S_OSRD}:{S_OSRD+3}], 0 offen")
            k += 1
    if stamp:
        stamp_end(a, S_WV, 2)
    a("s_endpgm")

    a.label(f"{name}_help")
    a(f"s_sub_u32 s33, s{S_WV}, 4")
    a(f"s_mul_i32 s59, s33, {EPB}")
    a(f"s_add_u32 s59, s59, {G2B}")
    a(f"s_lshl_b32 s38, s{S_RT}, 7")
    a("s_lshl_b32 s39, s33, 5")
    a("s_add_u32 s38, s38, s39")
    a(f"s_lshl_b32 s36, s{S_CT}, 7")
    a("v_lshrrev_b32 v4, 3, v2")
    a("v_add_u32 v4, s38, v4")
    a("v_lshlrev_b32 v4, 11, v4")
    a("v_and_b32 v5, 7, v2")
    a("v_lshl_add_u32 v4, v5, 4, v4")
    a("v_add_u32 v4, s36, v4")
    a("v_lshrrev_b32 v6, 4, v2")
    a("v_lshlrev_b32 v6, 14, v6")
    a("v_and_b32 v5, 15, v2")
    a("v_lshl_add_u32 v6, v5, 4, v6")
    a("s_lshl_b32 s56, s36, 11")
    a("s_lshl_b32 s57, s38, 3")
    a("s_add_u32 s56, s56, s57")
    a("v_add_u32 v6, s56, v6")
    a("s_waitcnt lgkmcnt(0)")
    a("s_barrier")
    srd(a, 24, 50, S*D*2)
    srd(a, 28, 4, S*D*2, add=WS_XN)
    srd(a, 16, 4, S*D*2, add=WS_YQ)
    for i in range(4):
        a(f"s_add_u32 m0, s59, {i*1024}")
        a(f"s_mov_b32 s60, {i*8*2048}")
        a(f"buffer_load_dwordx4 v4, s[24:27], s60 offen lds")
        a(f"s_add_u32 m0, s59, {4096 + i*1024}")
        a("s_nop 0")
        a(f"buffer_load_dwordx4 v4, s[28:31], s60 offen lds")
        a(f"s_add_u32 m0, s59, {8192 + i*1024}")
        a(f"s_mov_b32 s60, {i*4*16384}")
        a(f"buffer_load_dwordx4 v6, s[16:19], s60 offen lds")
    a("s_waitcnt vmcnt(0)")
    a(f"v_mov_b32 v23, {CNT}")
    a("v_mov_b32 v24, 1")
    a("s_mov_b64 exec, 1")
    a("ds_add_u32 v23, v24 offset:4")
    a("s_waitcnt lgkmcnt(0)")
    a.label(f"{name}_end")
    a("s_endpgm")
    return a.text() + kernel_desc(name, 224, 96)
```

```python
from asmgen import *
from gen_common import *

import os
TROWS = int(os.environ.get('TROWS', '320'))
NTOUCH = TROWS * 56 * 2 // 256
NTOUCH2 = 128
PREP_GRID = 768 + NTOUCH + NTOUCH2
def gen_prep(name="prep_kernel", stamp=False):
    a = Asm()
    a.raw(kernel_header(name))
    a(f"s_cmp_ge_u32 s2, {PREP_GRID}")
    a("s_cbranch_scc1 L_prep_end")
    a(f"s_cmp_lt_u32 s2, {NTOUCH}")
    a("s_cbranch_scc1 L_prep_touch")
    a(f"s_sub_u32 s2, s2, {NTOUCH}")
    a(f"s_cmp_lt_u32 s2, {NTOUCH2}")
    a("s_cbranch_scc1 L_prep_touch2")
    a(f"s_sub_u32 s2, s2, {NTOUCH2}")
    if stamp:
        stamp_begin(a); stamp_mid(a, 0); stamp_mid(a, 1)
    a("s_load_dwordx2 s[4:5], s[0:1], %d" % KA_Q)
    a("s_load_dwordx2 s[6:7], s[0:1], %d" % KA_WS)
    a("s_load_dwordx2 s[32:33], s[0:1], %d" % KA_K)
    a("s_load_dwordx2 s[34:35], s[0:1], %d" % KA_V)
    a("s_load_dwordx2 s[36:37], s[0:1], %d" % KA_SK)
    a("v_lshrrev_b32 v1, 6, v0")
    a("v_and_b32 v2, 63, v0")
    a("s_nop 0")
    a("v_readfirstlane_b32 s48, v1")
    a("s_waitcnt lgkmcnt(0)")
    a("s_cmp_ge_u32 s2, 512")
    a("s_cbranch_scc1 L_prep_kv")
    srd(a, 8, 4, S*D*2)
    srd(a, 12, 6, S*D*2, add=WS_XN)
    srd(a, 16, 6, S*8, add=WS_STATS)
    a("s_lshl_b32 s3, s2, 2")
    a("v_add_u32 v3, s3, v1")
    a("v_lshlrev_b32 v4, 11, v3")
    a("v_lshl_add_u32 v4, v2, 4, v4")
    a("buffer_load_dwordx4 v[8:11], v4, s[8:11], 0 offen")
    a("buffer_load_dwordx4 v[12:15], v4, s[8:11], 0 offen offset:1024")
    a("s_waitcnt vmcnt(0)")
    for i in range(8):
        a(f"v_lshlrev_b32 v{16+2*i}, 16, v{8+i}")
        a(f"v_and_b32 v{17+2*i}, 0xffff0000, v{8+i}")
    a("v_add_f32 v32, v16, v17")
    for i in range(2, 16):
        a(f"v_add_f32 v32, v32, v{16+i}")
    wave_reduce_add(a, 32, 33)
    a("v_mul_f32 v32, 0x3a800000, v32")
    a("v_sub_f32 v34, v16, v32")
    a("v_mul_f32 v35, v34, v34")
    for i in range(1, 16):
        a(f"v_sub_f32 v34, v{16+i}, v32")
        a(f"v_fmac_f32 v35, v34, v34")
    wave_reduce_add(a, 35, 33)
    a("v_mul_f32 v35, 0x3a800000, v35")
    a("v_cvt_pk_bf16_f32 v36, v32, v35")
    a("v_lshlrev_b32 v32, 16, v36")
    a("v_and_b32 v35, 0xffff0000, v36")
    a("v_add_f32 v35, 0x3727c5ac, v35")
    a("v_cvt_pk_bf16_f32 v36, v35, v35")
    a("v_lshlrev_b32 v35, 16, v36")
    a("v_sqrt_f32 v35, v35")
    a("s_nop 0")
    a("v_cvt_pk_bf16_f32 v36, v35, v35")
    a("v_lshlrev_b32 v35, 16, v36")
    a("v_rcp_f32 v37, v35")
    a("s_nop 0")
    for i in range(8):
        a(f"v_sub_f32 v38, v{16+2*i}, v32")
        a(f"v_sub_f32 v39, v{17+2*i}, v32")
        a(f"v_cvt_pk_bf16_f32 v38, v38, v39")
        a(f"v_lshlrev_b32 v39, 16, v38")
        a(f"v_and_b32 v38, 0xffff0000, v38")
        a(f"v_mul_f32 v39, v39, v37")
        a(f"v_mul_f32 v38, v38, v37")
        a(f"v_cvt_pk_bf16_f32 v{8+i}, v39, v38")
    a("buffer_store_dwordx4 v[8:11], v4, s[12:15], 0 offen")
    a("buffer_store_dwordx4 v[12:15], v4, s[12:15], 0 offen offset:1024")
    a("v_mov_b32 v40, v32")
    a("v_mov_b32 v41, v37")
    a("v_lshlrev_b32 v5, 3, v3")
    a("v_cmp_eq_u32 vcc, 0, v2")
    a("s_and_saveexec_b64 s[20:21], vcc")
    a("buffer_store_dwordx2 v[40:41], v5, s[16:19], 0 offen")
    if stamp:
        a("s_mov_b64 exec, -1")
        stamp_end(a, 48, 0, ws=6)
    a("s_endpgm")
    a.label("L_prep_kv")
    srd(a, 8, 32, S*D*2)
    srd(a, 12, 34, S*D*2)
    srd(a, 16, 36, D*4*2)
    srd(a, 20, 6, D*S*2, add=WS_KVT)
    a("s_sub_u32 s3, s2, 512")
    a("s_and_b32 s24, s3, 7")
    a("s_lshr_b32 s25, s3, 3")
    a("s_lshl_b32 s24, s24, 7")
    a("s_lshl_b32 s25, s25, 6")
    a("v_lshl_add_u32 v3, v2, 1, s24")
    a("v_lshl_add_u32 v4, v1, 4, s25")
    a("v_lshlrev_b32 v5, 3, v3")
    a("buffer_load_dwordx4 v[8:11], v5, s[16:19], 0 offen")
    a("v_lshlrev_b32 v6, 11, v4")
    a("v_lshl_add_u32 v6, v3, 1, v6")
    for r in range(19):
        off = (r - 3) * 2048
        a(f"v_add_u32 v7, {off & 0xffffffff:#x}, v6")
        a(f"buffer_load_dword v{16+r}, v7, s[8:11], 0 offen")
    for r in range(16):
        a(f"v_add_u32 v7, {r*2048:#x}, v6")
        a(f"buffer_load_dword v{36+r}, v7, s[12:15], 0 offen")
    a("s_waitcnt vmcnt(0)")
    a("v_lshlrev_b32 v52, 16, v8");  a("v_and_b32 v53, 0xffff0000, v8")
    a("v_lshlrev_b32 v54, 16, v9");  a("v_and_b32 v55, 0xffff0000, v9")
    a("v_lshlrev_b32 v56, 16, v10"); a("v_and_b32 v57, 0xffff0000, v10")
    a("v_lshlrev_b32 v58, 16, v11"); a("v_and_b32 v59, 0xffff0000, v11")
    for r in range(19):
        a(f"v_lshlrev_b32 v{64+r}, 16, v{16+r}")
        a(f"v_and_b32 v{84+r}, 0xffff0000, v{16+r}")
    for i in range(16):
        for (kb, wb, ob, sh) in ((64, 52, 104, 'lo'), (84, 56, 120, 'hi')):
            a(f"v_mul_f32 v60, v{kb+i}, v{wb+3}")
            a(f"v_fmac_f32 v60, v{kb+i+1}, v{wb+2}")
            a(f"v_fmac_f32 v60, v{kb+i+2}, v{wb+1}")
            a(f"v_fmac_f32 v60, v{kb+i+3}, v{wb+0}")
            a(f"v_cvt_pk_bf16_f32 v60, v60, v60")
            a(f"v_lshlrev_b32 v60, 16, v60")
            if sh == 'lo':
                a(f"v_lshlrev_b32 v61, 16, v{36+i}")
            else:
                a(f"v_and_b32 v61, 0xffff0000, v{36+i}")
            a(f"v_mul_f32 v{ob+i}, v60, v61")
    for i in range(8):
        a(f"v_cvt_pk_bf16_f32 v{16+i}, v{104+15-2*i}, v{104+14-2*i}")
        a(f"v_cvt_pk_bf16_f32 v{24+i}, v{120+15-2*i}, v{120+14-2*i}")
    a("v_sub_u32 v7, 2032, v4")
    a("v_lshlrev_b32 v7, 1, v7")
    a("v_lshl_add_u32 v7, v3, 12, v7")
    a("buffer_store_dwordx4 v[16:19], v7, s[20:23], 0 offen")
    a("buffer_store_dwordx4 v[20:23], v7, s[20:23], 0 offen offset:16")
    a("v_add_u32 v7, 4096, v7")
    a("buffer_store_dwordx4 v[24:27], v7, s[20:23], 0 offen")
    a("buffer_store_dwordx4 v[28:31], v7, s[20:23], 0 offen offset:16")
    if stamp:
        stamp_end(a, 48, 0, ws=6)
    a("s_endpgm")
    a.label("L_prep_touch")
    a("s_load_dwordx2 s[4:5], s[0:1], %d" % KA_W1)
    a("s_load_dwordx2 s[6:7], s[0:1], %d" % KA_W3)
    a("s_lshl_b32 s3, s2, 8")
    a("v_add_u32 v1, s3, v0")
    a(f"s_cmp_ge_u32 s2, {NTOUCH//2}")
    a("s_waitcnt lgkmcnt(0)")
    a("s_cselect_b32 s8, s6, s4")
    a("s_cselect_b32 s9, s7, s5")
    a(f"s_cselect_b32 s3, {TROWS*56}, 0")
    a(f"s_mov_b32 s10, {D*F*2}")
    a("s_mov_b32 s11, 0x00020000")
    a("v_subrev_u32 v1, s3, v1")
    a("v_lshlrev_b32 v1, 7, v1")
    a("buffer_load_dword v2, v1, s[8:11], 0 offen")
    a("s_endpgm")
    a.label("L_prep_touch2")
    a("s_load_dwordx2 s[8:9], s[0:1], %d" % KA_SSMK)
    a("s_lshl_b32 s3, s2, 8")
    a("v_add_u32 v1, s3, v0")
    a("v_lshlrev_b32 v1, 7, v1")
    a(f"s_mov_b32 s10, {D*S*2}")
    a("s_mov_b32 s11, 0x00020000")
    a("s_waitcnt lgkmcnt(0)")
    a("buffer_load_dword v2, v1, s[8:11], 0 offen")
    a.label("L_prep_end")
    a("s_endpgm")
    return a.text() + kernel_desc(name, 136, 96)
```

```python
from asmgen import *
from gen_common import *

STG = 30720
XB = 16384
WB = 7168
NS = 5
RING = STG * NS
CSOFF = RING
STX = RING + 896
OKW = RING + 960
STALL = RING + 1024
LDS_BYTES = RING + 1024 + 2048

def gen_k1i(name="k1_kernel", PD=6, stamp=False, nwg=256, it_flag=12, it_poll=5, it_post=3, it_kv=1, trow0=384, poll_max=200000, touch2=True, span=46, colsum=True, itstamp=False):
    a = Asm()
    a.raw(kernel_header(name))
    AF = 32; BF = 88; ONES = 120; GA = 128
    VA0, VA1, VAS, VB = 8, 9, 10, 11
    VD = 12
    VT = 23; VT2 = 22; VTD = 25
    S_XSRD = 8; S_W1SRD = 12; S_W3SRD = 16; S_T2SRD = 20; S_HSRD = 28
    S_WV = 32; S_XO = 33; S_WO = 34; S_CNT = 35
    S_SLOT = list(range(36, 44)) + [6, 7]
    S_RT = 44; S_CT = 45; S_S0 = 46; S_RD = 47; S_DM = 48; S_DELTA = 49; S_OK = 50; S_ROW = 51
    S_TO = 24; S_TO2 = 25
    a(f"s_cmp_ge_u32 s2, {nwg}")
    a(f"s_cbranch_scc1 {name}_end")
    if stamp:
        stamp_begin(a)
    a(f"s_load_dwordx2 s[4:5], s[0:1], {KA_WS}")
    a(f"s_load_dwordx4 s[52:55], s[0:1], {KA_W1}")
    a(f"s_load_dwordx4 s[92:95], s[0:1], {KA_Q}")
    a(f"s_load_dwordx2 s[90:91], s[0:1], {KA_DBG}")
    a(f"s_load_dwordx4 s[80:83], s[0:1], {KA_V}")
    a(f"s_load_dwordx2 s[84:85], s[0:1], {KA_SSMK}")
    a(f"s_load_dwordx2 s[86:87], s[0:1], {KA_W2}")
    a(f"s_load_dwordx2 s[88:89], s[0:1], {KA_K}")
    a("v_lshrrev_b32 v1, 6, v0")
    a("v_and_b32 v2, 63, v0")
    a("s_and_b32 s56, s2, 7")
    a(f"v_readfirstlane_b32 s{S_WV}, v1")
    a("s_lshr_b32 s57, s2, 3")
    a("s_and_b32 s58, s56, 1")
    a("s_lshl_b32 s58, s58, 2")
    a("s_and_b32 s59, s57, 3")
    a(f"s_add_u32 s{S_RT}, s58, s59")
    a("s_lshr_b32 s58, s56, 1")
    a("s_lshl_b32 s58, s58, 3")
    a("s_lshr_b32 s59, s57, 2")
    a(f"s_add_u32 s{S_CT}, s58, s59")
    a("v_lshlrev_b32 v26, 4, v2")
    a("v_lshrrev_b32 v3, 4, v2")
    a("v_sub_u32 v3, 0, v3")
    a("v_xor_b32 v3, v3, v2")
    a("v_and_b32 v3, 3, v3")
    a("v_lshrrev_b32 v4, 2, v2")
    a(f"s_lshl_b32 s56, s{S_RT}, 8")
    a("v_add_u32 v4, s56, v4")
    a("v_lshlrev_b32 v4, 11, v4")
    a("v_lshl_add_u32 v27, v3, 4, v4")
    a(f"s_mul_i32 s56, s{S_WV}, 5")
    for sl in range(5):
        a(f"s_add_u32 s57, s56, {sl}")
        a(f"s_lshl_b32 s{S_SLOT[sl]}, s57, 10")
        a("s_lshl_b32 s57, s57, 15")
        a(f"v_add_u32 v{VD+sl}, s57, v27")
    a(f"s_mul_i32 s58, s{S_CT}, 224")
    a(f"s_and_b32 s59, s{S_CT}, 1")
    a("s_lshl_b32 s60, s59, 5")
    a("s_add_u32 s60, s60, s58")
    a("s_xor_b32 s59, s59, 1")
    a("s_mul_i32 s61, s59, 192")
    a("s_add_u32 s61, s61, s58")
    a("v_lshrrev_b32 v3, 4, v2")
    a("v_bfe_u32 v4, v2, 2, 2")
    a("v_and_b32 v5, 3, v2")
    a("v_and_b32 v6, 2, v3")
    a("v_lshlrev_b32 v6, 1, v6")
    a("v_and_b32 v7, 1, v3")
    a("v_add_u32 v6, v6, v7")
    a("v_and_b32 v7, 2, v5")
    a("v_add_u32 v6, v6, v7")
    a("v_lshl_add_u32 v6, v6, 2, v4")
    a("v_mul_u32_u24 v6, 0x1c00, v6")
    a("v_and_b32 v7, 1, v5")
    a("v_lshlrev_b32 v7, 4, v7")
    a("v_add3_u32 v22, v6, v7, s61")
    def w_slot(sl, s_E):
        a(f"s_cmp_ge_u32 s{s_E}, 7")
        a(f"s_cselect_b32 s62, 7, 0")
        a(f"s_sub_u32 s62, s{s_E}, s62")
        a("s_lshl_b32 s63, s62, 2")
        a("v_add_u32 v6, s63, v3")
        a("v_mul_u32_u24 v7, 86, v6")
        a("v_lshrrev_b32 v7, 8, v7")
        a("v_mul_u32_u24 v28, 3, v7")
        a("v_sub_u32 v6, v6, v28")
        a("v_and_b32 v28, 2, v7")
        a("v_xor_b32 v28, v28, v5")
        a("v_lshlrev_b32 v28, 4, v28")
        a("v_lshl_add_u32 v28, v6, 6, v28")
        a("v_lshl_add_u32 v7, v7, 2, v4")
        a("v_mul_u32_u24 v7, 0x1c00, v7")
        a("v_add3_u32 v29, v7, v28, s60")
        a("s_cmp_eq_u32 s62, 6")
        a("s_cselect_b64 vcc, -1, 0")
        a(f"v_cndmask_b32 v{VD+sl}, v29, v22, vcc")
        a(f"s_lshl_b32 s{S_SLOT[sl]}, s{s_E}, 10")
        a(f"s_add_u32 s{S_SLOT[sl]}, s{S_SLOT[sl]}, {XB}")
    a(f"s_lshl_b32 s56, s{S_WV}, 2")
    for sl in range(6, 10):
        a(f"s_add_u32 s57, s56, {sl-6}")
        w_slot(sl, 57)
    a(f"s_add_u32 s57, s{S_WV}, 11")
    w_slot(5, 57)
    a(f"s_cmp_eq_u32 s{S_WV}, 0")
    a(f"s_cselect_b32 s{S_SLOT[5]}, {15*1024}, s{S_SLOT[5]}")
    a("s_cselect_b64 vcc, -1, 0")
    a(f"v_add_u32 v6, {15*32768}, v27")
    a(f"v_cndmask_b32 v{VD+5}, v{VD+5}, v6, vcc")
    a("s_waitcnt lgkmcnt(0)")
    srd(a, S_XSRD, 92, S*D*2)
    srd(a, S_W1SRD, 52, D*F*2)
    srd(a, S_W3SRD, 54, D*F*2)
    srd(a, S_T2SRD, 94, S*D*2)
    for w in range(1, 4):
        a(f"s_cmp_eq_u32 s{S_WV}, {w}")
        a(f"s_cbranch_scc1 {name}_p{w}")

    order = []
    for l in range(7):
        order.append((0, l)); order.append((1, l))
    def slot_info(wv, sl):
        if sl < 5 or (sl == 5 and wv == 0):
            return S_XSRD, S_XO
        E = 4*wv + sl - 6 if sl >= 6 else 11 + wv
        return (S_W3SRD if E >= 7 else S_W1SRD), S_WO
    def dma_m0(sl):
        return f"s_add_u32 m0, s{S_DM}, s{S_SLOT[sl]}"
    def dma_ld(wv, sl, tag):
        sr, so = slot_info(wv, sl)
        a.vmem(f"buffer_load_dwordx4 v{VD+sl}, s[{sr}:{sr+3}], s{so} offen lds", tag=tag)
    adv_instrs = [f"s_add_u32 s{S_XO}, s{S_XO}, 64", f"s_add_u32 s{S_WO}, s{S_WO}, {32*7168}", f"s_add_u32 s{S_DM}, s{S_DM}, {STG}"]
    def dma_wrap():
        a(f"s_cmp_eq_u32 s{S_DM}, {STG*NS}")
        a(f"s_cselect_b32 s{S_DM}, 0, s{S_DM}")
    def rd_a1(ai, hf, tag):
        m, l = order[ai]
        Wm = XB + m*WB
        if l < 6:
            base = VA0 if (l & 1) == 0 else VA1
            imm = Wm + (hf*3 + (l >> 1))*256
        else:
            base = VAS
            imm = Wm + 6144 + hf*256
        a.lds(f"ds_read_b64_tr_b16 v[{AF+4*ai+2*hf}:{AF+4*ai+2*hf+1}], v{base} offset:{imm}", tag=tag)
    def rd_b(bs, bt, tag):
        r = BF + 16*bs + 4*bt
        a.lds(f"ds_read_b128 v[{r}:{r+3}], v{VB} offset:{bt*1024}", tag=tag)
    def acc(m, l, bt):
        i = (l*4 + bt)*4
        return f"v[{GA+i}:{GA+i+3}]" if m == 0 else f"a[{i}:{i+3}]"
    def call(sub):
        a(f"s_call_b64 s[100:101], {name}_sub_{sub}")
    def once(lbl, it, fn):
        a(f"s_cmp_lg_u32 s{S_CNT}, {it}")
        a(f"s_cbranch_scc1 {lbl}")
        fn()
        a.label(lbl)
    def touch_ops(par):
        sr = S_W1SRD if par == 0 else S_W3SRD
        a.vmem(f"buffer_load_dword v{VTD}, v{VT}, s[{sr}:{sr+3}], s{S_TO} offen", tag=("t", 0))
    def touch2_op():
        a.vmem(f"buffer_load_dword v{VTD}, v{VT2}, s[{S_T2SRD}:{S_T2SRD+3}], s{S_TO2} offen", tag=("t", 0))

    def path(wv):
        lbl = f"{name}_p{wv}"
        nd = 10 if wv < 3 else 0
        a.label(lbl)
        a.lgkm = []; a.vm = []
        call("sl")
        a.vm += [("q", 0)]*4
        if wv < 3:
            for st in range(2):
                a(f"s_mov_b32 s{S_XO}, {st*64}")
                a(f"s_mov_b32 s{S_WO}, {st*32*7168}")
                for sl in range(nd):
                    a(f"s_add_u32 m0, s{S_SLOT[sl]}, {st*STG}")
                    a("s_nop 0")
                    dma_ld(wv, sl, ("d", st))
            a(f"s_mov_b32 s{S_XO}, {2*64}")
            a(f"s_mov_b32 s{S_WO}, {2*32*7168}")
            a(f"s_mov_b32 s{S_DM}, {2*STG}")
        else:
            call("ta")
            for i in range((trow0 - 128) // 64):
                a(f"buffer_load_dword v{VTD}, v{VT}, s[{S_W1SRD}:{S_W1SRD+3}], s{S_TO} offen")
                a(f"buffer_load_dword v{VTD}, v{VT}, s[{S_W3SRD}:{S_W3SRD+3}], s{S_TO} offen")
                a(f"s_add_u32 s{S_TO}, s{S_TO}, {64*7168}")
                a.vm += [("t", 0)]*2
        call("setup")
        a.wait_vm(("q", 0))
        call("sc")
        if wv < 3:
            a.wait_vm(("d", 0))
        a("s_waitcnt lgkmcnt(0)")
        a("s_barrier")
        if wv == 3:
            call("ss")
        for ai in range(PD):
            rd_a1(ai, 0, ("a", 0, ai)); rd_a1(ai, 1, ("a", 0, ai))
            if ai < 4:
                rd_b(0, ai, ("b", 0, ai))
        if stamp:
            stamp_mid(a, 0)
        def stage(ph, peel):
            if wv < 3:
                a.wait_vm(("d", ph + 1))
            a("s_barrier")
            if ph == 0 and itstamp and not peel:
                a("s_memtime s[98:99]")
                a("s_waitcnt lgkmcnt(0)")
                a(f"v_mov_b32 v254, s98")
                a(f"v_cmp_eq_u32 vcc, s{S_CNT}, v2")
                a("s_nop 1")
                a("v_cndmask_b32 v255, v255, v254, vcc")
            if ph == 0 and wv == 3 and not peel:
                once(f"{lbl}_t1", 12, lambda: call("t2v"))
                once(f"{lbl}_t2", 8, lambda: call("t2s"))
                once(f"{lbl}_t3", 4, lambda: call("t2w"))
                def flag():
                    a(f"s_waitcnt vmcnt({4*(16 - it_flag)})")
                    a("s_mov_b64 exec, 1")
                    a("buffer_atomic_or v28, v27, s[56:59], 0 offen sc1")
                    a("s_mov_b64 exec, -1")
                once(f"{lbl}_o4", it_flag, flag)
                once(f"{lbl}_o6", it_poll, lambda: a("buffer_load_dword v31, v27, s[56:59], 0 offen sc1"))
                def post():
                    a(f"s_waitcnt vmcnt({4*(it_poll - it_post) - 1})")
                    a("v_readfirstlane_b32 s60, v31")
                    a("s_nop 3")
                    a("s_cmp_lg_u32 s60, -1")
                    a(f"s_cbranch_scc1 {lbl}_o8")
                    call("post")
                    a(f"s_mov_b32 s{S_OK}, 1")
                once(f"{lbl}_o8", it_post, post)
            gaps = [[] for _ in range(56)]
            for g in range(14):
                ga = g + PD
                tgt = (ga, ph) if ga < 14 else (ga - 14, 1 - ph)
                gaps[4*g + 0].append(lambda t=tgt: rd_a1(t[0], 0, ("a", t[1], t[0])))
                gaps[4*g + 1].append(lambda t=tgt: rd_a1(t[0], 1, ("a", t[1], t[0])))
                gb = g - (14 - PD)
                if 0 <= gb < 4:
                    gaps[4*g + 2].append(lambda gb=gb: rd_b(1 - ph, gb, ("b", 1 - ph, gb)))
            if wv < 3:
                def adv_all():
                    for x in adv_instrs:
                        a(x)
                    dma_wrap()
                if peel:
                    for rep in range(2):
                        for i in range(nd):
                            gp = 1 + 26*rep + (24 * i) // nd + (wv % 2)
                            gaps[gp].append(lambda i=i: (a(dma_m0(i)), a("s_nop 0"), None)[-1])
                            gaps[gp].append(lambda i=i, rep=rep: dma_ld(wv, i, ("d", 2 + 2*ph + rep)))
                        gaps[26*rep + 26].append(adv_all)
                else:
                    last = 0
                    for i in range(nd):
                        gp = (1 + (span * (3*i + wv)) // 30) if span else 4*i + 2
                        gaps[gp].append(lambda i=i: a(dma_m0(i)))
                        gaps[gp + 1].append(lambda i=i: dma_ld(wv, i, ("d", ph + 4)))
                        last = gp + 1
                    gaps[last + 1].append(lambda: a(adv_instrs[0]))
                    gaps[last + 1].append(lambda: a(adv_instrs[1]))
                    gaps[last + 2].append(lambda: a(adv_instrs[2]))
                    gaps[last + 3].append(dma_wrap)
            else:
                sr = S_W1SRD if ph == 0 else S_W3SRD
                gaps[2].append(lambda sr=sr: a(f"buffer_load_dword v{VTD}, v{VT}, s[{sr}:{sr+3}], s{S_TO} offen"))
                if ph == 1:
                    gaps[6].append(lambda: a(f"s_add_u32 s{S_TO}, s{S_TO}, {64*7168}"))
                gaps[10].append(lambda: a(f"buffer_load_dword v{VTD}, v{VT2}, s[{S_T2SRD}:{S_T2SRD+3}], s{S_TO2} offen"))
                gaps[14].append(lambda: a(f"s_add_u32 s{S_TO2}, s{S_TO2}, {8192*128}"))
            g = 14 - PD - 1
            def rd_adv1():
                a(f"s_add_u32 s{S_DELTA}, s{S_RD}, {STG}")
                a(f"s_cmp_eq_u32 s{S_DELTA}, {STG*NS}")
                a(f"s_cselect_b32 s62, 0, s{S_DELTA}")
            def rd_adv2():
                a(f"s_sub_u32 s{S_DELTA}, s62, s{S_RD}")
                a(f"s_mov_b32 s{S_RD}, s62")
            gaps[4*g - 2].append(rd_adv1)
            gaps[4*g - 1].append(rd_adv2)
            gaps[4*g + 1].append(lambda: a(f"v_add_u32 v{VA0}, s{S_DELTA}, v{VA0}"))
            gaps[4*g + 2].append(lambda: a(f"v_add_u32 v{VA1}, s{S_DELTA}, v{VA1}"))
            gaps[4*g + 2].append(lambda: a(f"v_add_u32 v{VAS}, s{S_DELTA}, v{VAS}"))
            gaps[4*g + 3].append(lambda: a(f"v_add_u32 v{VB}, s{S_DELTA}, v{VB}"))
            for g in range(14):
                m, l = order[g]
                tags = [("a", ph, g)]
                if g == 0:
                    tags += [("b", ph, bt) for bt in range(4)]
                a.wait_lgkm(*tags)
                for bt in range(4):
                    r = BF + 16*ph + 4*bt
                    first = peel and ph == 0
                    a(f"v_mfma_f32_16x16x32_bf16 {acc(m,l,bt)}, v[{AF+4*g}:{AF+4*g+3}], v[{r}:{r+3}], {'0' if first else acc(m,l,bt)}")
                    if colsum and bt == 3 and g % 4 == wv:
                        c = 240 + 4*(g // 4)
                        a(f"v_mfma_f32_16x16x32_bf16 a[{c}:{c+3}], v[{AF+4*g}:{AF+4*g+3}], v[{ONES}:{ONES+3}], {'0' if first else 'a[%d:%d]' % (c, c+3)}")
                    for f in gaps[4*g + bt]:
                        f()
        stage(0, True); stage(1, True)
        if wv < 3:
            a.vm = [(t, k - 2) for (t, k) in a.vm]
        a(f"s_mov_b32 s{S_CNT}, 15")
        a.label(f"{lbl}_loop")
        entry_l = list(a.lgkm); entry_v = list(a.vm)
        stage(0, False); stage(1, False)
        assert a.lgkm == entry_l, (a.lgkm, entry_l)
        if wv < 3:
            assert [(t, k - 2) for (t, k) in a.vm] == entry_v, (a.vm, entry_v)
        a(f"s_sub_u32 s{S_CNT}, s{S_CNT}, 1")
        a(f"s_cmp_lg_u32 s{S_CNT}, 0")
        a(f"s_cbranch_scc1 {lbl}_loop")
        a.lgkm = []; a.vm = []
        if stamp:
            stamp_mid(a, 1)
        if itstamp:
            srd(a, 92, 4, 1 << 20, add=WS_STAMP + (3 << 20))
            a("s_lshl_b32 s60, s2, 2")
            a(f"s_add_u32 s60, s60, s{S_WV}")
            a("s_lshl_b32 s60, s60, 8")
            a("v_lshlrev_b32 v3, 2, v2")
            a("v_add_u32 v3, s60, v3")
            a("buffer_store_dword v255, v3, s[92:95], 0 offen")
        call("kvl")
        a("v_lshrrev_b32 v3, 4, v2")
        a("v_lshlrev_b32 v3, 4, v3")
        a(f"v_add_u32 v3, {CSOFF}, v3")
        a("s_nop 7")
        a("s_mov_b32 s60, 0x00010001")
        a("s_mov_b32 s61, 0x00010001")
        a("s_mov_b64 exec, s[60:61]")
        for g in range(wv, 14, 4):
            c = 240 + 4*(g // 4)
            a(f"ds_write_b128 v3, a[{c}:{c+3}] offset:{g*64}")
        a("s_mov_b64 exec, -1")
        if wv == 3:
            a(f"s_cmp_eq_u32 s{S_OK}, 1")
            a(f"s_cbranch_scc1 {lbl}_fb")
            a(f"s_mov_b32 s62, {poll_max}")
            a.label(f"{lbl}_poll")
            a("buffer_load_dword v31, v27, s[56:59], 0 offen sc1")
            a("s_waitcnt vmcnt(0)")
            a("v_readfirstlane_b32 s60, v31")
            a("s_nop 3")
            a("s_cmp_eq_u32 s60, -1")
            a(f"s_cbranch_scc1 {lbl}_pd")
            a("s_sleep 8")
            a("s_sub_u32 s62, s62, 1")
            a("s_cmp_lg_u32 s62, 0")
            a(f"s_cbranch_scc1 {lbl}_poll")
            a.label(f"{lbl}_pd")
            call("post")
            a.label(f"{lbl}_fb")
            a("s_waitcnt vmcnt(0)")
            a(f"v_lshlrev_b32 v3, 5, v2")
            a(f"v_add_u32 v3, {STALL}, v3")
            a("ds_write_b128 v3, v[240:243]")
            a("ds_write_b128 v3, v[244:247] offset:16")
        else:
            a(f"s_branch {name}_epi")
    for wv in range(4):
        path(wv)
    a.label(f"{name}_epi")
    a("s_waitcnt lgkmcnt(0)")
    a("s_barrier")
    if stamp: a("s_memtime s[92:93]")
    srd(a, S_HSRD, 4, S*F*2, add=WS_H)
    a("v_lshrrev_b32 v7, 4, v2")
    a("v_lshlrev_b32 v3, 4, v7")
    a(f"v_add_u32 v3, {CSOFF}, v3")
    for g in range(14):
        a(f"ds_read_b128 v[{32+4*g}:{35+4*g}], v3 offset:{g*64}")
    a("v_and_b32 v5, 15, v2")
    a(f"s_lshl_b32 s60, s{S_WV}, 9")
    a(f"s_add_u32 s60, s60, {STALL}")
    a("v_lshl_add_u32 v5, v5, 3, s60")
    for bt in range(4):
        a(f"ds_read_b64 v[{88+2*bt}:{89+2*bt}], v5 offset:{bt*128}")
    a("s_waitcnt lgkmcnt(0)")
    a("s_mov_b32 s56, 0xbfb8aa3b")
    for bt in range(4):
        a(f"v_sub_f32 v{8+2*bt}, 0, v{88+2*bt}")
        a(f"v_rcp_f32 v{16+2*bt}, v{89+2*bt}")
        a(f"v_mul_f32 v{240+2*bt}, v{89+2*bt}, v{89+2*bt}")
    for bt in range(4):
        a(f"v_mul_f32 v{16+2*bt}, s56, v{16+2*bt}")
    a(f"s_lshl_b32 s54, s{S_RT}, 4")
    a(f"s_lshl_b32 s55, s{S_WV}, 2")
    a("s_add_u32 s54, s54, s55")
    a("s_mul_i32 s54, s54, 112")
    a(f"s_mul_i32 s58, s{S_CT}, 224")
    a(f"s_and_b32 s59, s{S_CT}, 1")
    a("s_lshl_b32 s60, s59, 5")
    a("s_add_u32 s60, s60, s58")
    a("s_lshr_b32 s60, s60, 6")
    a("s_xor_b32 s59, s59, 1")
    a("s_mul_i32 s61, s59, 192")
    a("s_add_u32 s61, s61, s58")
    a("s_lshr_b32 s55, s61, 6")
    a("s_bfe_u32 s61, s61, 0x10005")
    a("s_lshl_b32 s61, s61, 3")
    a("s_add_u32 s60, s60, s54")
    a("s_lshl_b32 s60, s60, 10")
    a("s_add_u32 s55, s55, s54")
    a("s_lshl_b32 s55, s55, 10")
    a("s_add_u32 s55, s55, s61")
    a("v_add_u32 v4, s55, v26")
    a("v_add_u32 v3, s60, v26")
    a("s_waitcnt lgkmcnt(0)")
    def hcalc(l, bt, T, O):
        G = GA + (l*4 + bt)*4
        U = (l*4 + bt)*4
        C1 = 32 + 4*(2*l); C3 = 32 + 4*(2*l + 1)
        NM, C1S, I2 = 8 + 2*bt, 16 + 2*bt, 240 + 2*bt
        bc = "op_sel_hi:[1,0,1]"
        for r in range(4):
            a(f"v_accvgpr_read_b32 v{T+4+r}, a{U+r}")
        for r in (0, 2):
            a(f"v_pk_fma_f32 v[{G+r}:{G+r+1}], v[{C1+r}:{C1+r+1}], v[{NM}:{NM+1}], v[{G+r}:{G+r+1}] {bc}")
        for r in (0, 2):
            a(f"v_pk_mul_f32 v[{T+r}:{T+r+1}], v[{G+r}:{G+r+1}], v[{C1S}:{C1S+1}] op_sel_hi:[1,0]")
        for r in range(4):
            a(f"v_exp_f32 v{T+r}, v{T+r}")
        for r in (0, 2):
            a(f"v_pk_fma_f32 v[{T+4+r}:{T+5+r}], v[{C3+r}:{C3+r+1}], v[{NM}:{NM+1}], v[{T+4+r}:{T+5+r}] {bc}")
        for r in (0, 2):
            a(f"v_pk_fma_f32 v[{T+r}:{T+r+1}], v[{T+r}:{T+r+1}], v[{I2}:{I2+1}], v[{I2}:{I2+1}] op_sel_hi:[1,0,0]")
        for r in (0, 2):
            a(f"v_pk_mul_f32 v[{T+4+r}:{T+5+r}], v[{T+4+r}:{T+5+r}], v[{G+r}:{G+r+1}]")
        for r in range(4):
            a(f"v_rcp_f32 v{T+r}, v{T+r}")
        a("s_nop 0")
        for r in (0, 2):
            a(f"v_pk_mul_f32 v[{T+4+r}:{T+5+r}], v[{T+4+r}:{T+5+r}], v[{T+r}:{T+r+1}]")
        a(f"v_cvt_pk_bf16_f32 v{O}, v{T+4}, v{T+5}")
        a(f"v_cvt_pk_bf16_f32 v{O+1}, v{T+6}, v{T+7}")
    k = 0
    TA, TB = 96, 104
    for bt in range(4):
        for p in range(3):
            O = 112 + (k % 2) * 4
            hcalc(2*p, bt, TA, O)
            hcalc(2*p+1, bt, TB, O + 2)
            a(f"buffer_store_dwordx4 v[{O}:{O+3}], v3, s[{S_HSRD}:{S_HSRD+3}], 0 offen offset:{p*1024}")
            k += 1
        hcalc(6, bt, TA, 120)
        a(f"buffer_store_dwordx2 v[120:121], v4, s[{S_HSRD}:{S_HSRD+3}], 0 offen")
        if bt < 3:
            a(f"v_add_u32 v3, {112*1024}, v3")
            a(f"v_add_u32 v4, {112*1024}, v4")
    if stamp: a("s_memtime s[94:95]")
    a("s_waitcnt vmcnt(16)")
    srd(a, 92 if not stamp else 24, 4, D*S*2, add=WS_KVT)
    KS = 92 if not stamp else 24
    a("v_and_b32 v7, 15, v2")
    a("v_lshlrev_b32 v7, 10, v7")
    a("v_lshrrev_b32 v5, 4, v2")
    a("v_lshlrev_b32 v5, 3, v5")
    a("v_sub_u32 v7, v7, v5")
    a(f"s_lshl_b32 s60, s{S_WV}, 5")
    a(f"s_sub_u32 s60, 120, s60")
    a("v_add_u32 v7, s60, v7")
    for p in range(4):
        R = 128 + (p % 2) * 48
        for r in range(7):
            a(f"v_accvgpr_read_b32 v{R+r}, a{192+4*r+p}")
        for r in range(4):
            a(f"v_accvgpr_read_b32 v{R+7+r}, a{220+4*r+p}")
        for r in range(4):
            a(f"v_accvgpr_read_b32 v{R+11+r}, a{156+4*p+r}")
        W = R + 16
        a(f"v_lshlrev_b32 v{W+0}, 16, v{R+11}");        a(f"v_lshlrev_b32 v{W+1}, 16, v{R+13}")
        a(f"v_and_b32 v{W+2}, 0xffff0000, v{R+11}");    a(f"v_and_b32 v{W+3}, 0xffff0000, v{R+13}")
        a(f"v_lshlrev_b32 v{W+4}, 16, v{R+12}");        a(f"v_lshlrev_b32 v{W+5}, 16, v{R+14}")
        a(f"v_and_b32 v{W+6}, 0xffff0000, v{R+12}");    a(f"v_and_b32 v{W+7}, 0xffff0000, v{R+14}")
        K = R + 24
        for r in range(7):
            a(f"v_lshlrev_b32 v{K+2*r}, 16, v{R+r}")
            a(f"v_and_b32 v{K+2*r+1}, 0xffff0000, v{R+r}")
        t = R + 38
        O = [R+40+i for i in range(8)]
        for i in range(4):
            a(f"v_pk_mul_f32 v[{t}:{t+1}], v[{K+2*i}:{K+2*i+1}], v[{W+6}:{W+7}]")
            a(f"v_pk_fma_f32 v[{t}:{t+1}], v[{K+2*(i+1)}:{K+2*(i+1)+1}], v[{W+4}:{W+5}], v[{t}:{t+1}]")
            a(f"v_pk_fma_f32 v[{t}:{t+1}], v[{K+2*(i+2)}:{K+2*(i+2)+1}], v[{W+2}:{W+3}], v[{t}:{t+1}]")
            a(f"v_pk_fma_f32 v[{t}:{t+1}], v[{K+2*(i+3)}:{K+2*(i+3)+1}], v[{W}:{W+1}], v[{t}:{t+1}]")
            a(f"v_cvt_pk_bf16_f32 v{t}, v{t}, v{t+1}")
            a(f"v_and_b32 v{t+1}, 0xffff0000, v{t}")
            a(f"v_lshlrev_b32 v{t}, 16, v{t}")
            a(f"v_lshlrev_b32 v{R+15}, 16, v{R+7+i}")
            a(f"v_and_b32 v{R+7+i}, 0xffff0000, v{R+7+i}")
            a(f"v_mul_f32 v{O[i]}, v{t}, v{R+15}")
            a(f"v_mul_f32 v{O[4+i]}, v{t+1}, v{R+7+i}")
        Q = 96 + 4*(p % 2)
        a(f"v_cvt_pk_bf16_f32 v{Q}, v{O[3]}, v{O[2]}")
        a(f"v_cvt_pk_bf16_f32 v{Q+1}, v{O[1]}, v{O[0]}")
        a(f"v_cvt_pk_bf16_f32 v{Q+2}, v{O[7]}, v{O[6]}")
        a(f"v_cvt_pk_bf16_f32 v{Q+3}, v{O[5]}, v{O[4]}")
        a(f"ds_write_b64 v7, v[{Q}:{Q+1}] offset:{(2*p)*128}")
        a(f"ds_write_b64 v7, v[{Q+2}:{Q+3}] offset:{(2*p+1)*128}")
    a("s_waitcnt lgkmcnt(0)")
    a("s_barrier")
    a(f"s_lshl_b32 s60, s{S_WV}, 12")
    a("v_add_u32 v7, s60, v26")
    for i in range(4):
        a(f"ds_read_b128 v[{128+4*i}:{131+4*i}], v7 offset:{i*1024}")
    a("v_lshrrev_b32 v5, 3, v2")
    a(f"s_lshl_b32 s60, s{S_RT}, 7")
    a(f"s_lshl_b32 s61, s{S_WV}, 5")
    a("s_add_u32 s60, s60, s61")
    a("v_add_u32 v5, s60, v5")
    a("v_lshlrev_b32 v5, 12, v5")
    a("v_and_b32 v6, 7, v2")
    a("v_lshl_add_u32 v5, v6, 4, v5")
    a(f"s_lshl_b32 s60, s{S_CT}, 7")
    a("s_sub_u32 s60, 3968, s60")
    a("v_add_u32 v5, s60, v5")
    srd(a, 80, 4, 4096, add=WS_FLAGS)
    a("s_lshl_b32 s58, s2, 4")
    a("v_lshlrev_b32 v23, 2, v0")
    a("v_add_u32 v23, s58, v23")
    a("v_mov_b32 v24, 0x80000000")
    a("v_cmp_gt_u32 vcc, 4, v0")
    a("v_mov_b32 v28, 0")
    a("s_nop 0")
    a("v_cndmask_b32 v23, v24, v23, vcc")
    a("buffer_store_dword v28, v23, s[80:83], 0 offen")
    a("s_waitcnt lgkmcnt(0)")
    for i in range(4):
        a(f"v_add_u32 v6, {i*8*4096}, v5")
        a(f"buffer_store_dwordx4 v[{128+4*i}:{131+4*i}], v6, s[{KS}:{KS+3}], 0 offen")
    if stamp:
        a("s_waitcnt lgkmcnt(0)")
        a("s_sub_u32 s96, s94, s92")
        a("s_mov_b32 s94, 0")
        a("s_sub_u32 s92, s92, s70")
        stamp_end(a, S_WV, 1)
        a("v_mov_b32 v12, s92"); a("v_mov_b32 v13, s94")
        a("buffer_store_dwordx2 v[12:13], v5, s[76:79], 0 offen offset:24")
        a("v_mov_b32 v14, s96")
        a("buffer_store_dword v14, v5, s[76:79], 0 offen offset:20")
    a.label(f"{name}_end")
    a("s_endpgm")

    def sub_sl():
        a(f"s_lshl_b32 s60, s{S_RT}, 8")
        a(f"s_lshl_b32 s61, s{S_CT}, 3")
        a("s_add_u32 s60, s60, s61")
        a(f"s_lshl_b32 s61, s{S_WV}, 1")
        a(f"s_add_u32 s{S_ROW}, s60, s61")
        a(f"s_lshl_b32 s60, s{S_ROW}, 11")
        a("v_add_u32 v3, s60, v26")
        for rw in range(2):
            a(f"buffer_load_dwordx4 v[{32+8*rw}:{35+8*rw}], v3, s[{S_XSRD}:{S_XSRD+3}], 0 offen offset:{rw*2048}")
            a(f"buffer_load_dwordx4 v[{36+8*rw}:{39+8*rw}], v3, s[{S_XSRD}:{S_XSRD+3}], 0 offen offset:{rw*2048+1024}")
    def sub_setup():
        a("v_lshrrev_b32 v3, 4, v2")
        a("v_bfe_u32 v4, v2, 2, 2")
        a("v_and_b32 v5, 3, v2")
        a("v_lshlrev_b32 v6, 6, v4")
        a("v_lshl_add_u32 v6, v5, 3, v6")
        a("v_and_b32 v7, 1, v3")
        a("v_mul_u32_u24 v27, 1536, v3")
        a("v_add_u32 v27, v27, v6")
        a(f"v_lshl_add_u32 v{VA0}, v7, 5, v27")
        a("v_xor_b32 v28, 1, v7")
        a(f"v_lshl_add_u32 v{VA1}, v28, 5, v27")
        a("v_lshrrev_b32 v28, 1, v3")
        a("v_lshlrev_b32 v28, 9, v28")
        a("v_add_u32 v28, v28, v6")
        a(f"v_lshl_add_u32 v{VAS}, v7, 5, v28")
        a("v_lshrrev_b32 v6, 2, v2")
        a("v_sub_u32 v6, 0, v6")
        a("v_xor_b32 v6, v6, v3")
        a("v_and_b32 v6, 3, v6")
        a("v_and_b32 v7, 15, v2")
        a(f"s_lshl_b32 s60, s{S_WV}, 6")
        a("v_add_u32 v7, s60, v7")
        a("v_lshlrev_b32 v7, 6, v7")
        a(f"v_lshl_add_u32 v{VB}, v6, 4, v7")
        for i in range(4):
            a(f"v_mov_b32 v{ONES+i}, 0x3f803f80")
        a(f"s_mov_b32 s{S_RD}, 0")
        a(f"s_mov_b32 s{S_OK}, 0")
        a("v_mov_b32 v31, 0")
        a("s_mov_b32 s56, s90"); a("s_mov_b32 s57, s91"); a("s_mov_b32 s58, 256"); a("s_mov_b32 s59, 0x00020000")
        a(f"s_lshl_b32 s60, s{S_RT}, 2")
        a("v_mov_b32 v27, s60")
        a(f"s_lshl_b32 s60, 1, s{S_CT}")
        a("v_mov_b32 v28, s60")
    def sub_ta():
        a("v_lshlrev_b32 v3, 7, v2")
        a("s_lshl_b32 s61, s2, 11")
        a(f"v_add_u32 v{VT}, s61, v3")
        a("s_lshl_b32 s61, s2, 12")
        a(f"v_add_u32 v{VT2}, s61, v3")
        a("v_mov_b32 v24, 0x80000000")
        a("v_cmp_gt_u32 vcc, 16, v2")
        a("v_cmp_gt_u32 s[60:61], 32, v2")
        a(f"s_mov_b32 s{S_TO}, {128*7168}")
        a(f"v_cndmask_b32 v{VT}, v24, v{VT}, vcc")
        a(f"v_cndmask_b32 v{VT2}, v24, v{VT2}, s[60:61]")
        a(f"s_mov_b32 s{S_TO2}, 0")
    def sub_ta2():
        per = (trow0 - 128) * 56 // 1024 + 1
        a("s_lshl_b32 s60, s2, 2")
        a(f"s_add_u32 s60, s60, s{S_WV}")
        a(f"s_mul_i32 s61, s60, {per}")
        a("v_add_u32 v5, s61, v2")
        a("v_lshlrev_b32 v5, 7, v5")
        a(f"v_cmp_gt_u32 vcc, {per}, v2")
        a(f"s_mov_b32 s61, {128*7168}")
        a("v_cndmask_b32 v5, v24, v5, vcc")
        a(f"buffer_load_dword v{VTD}, v5, s[{S_W1SRD}:{S_W1SRD+3}], s61 offen")
        a(f"buffer_load_dword v{VTD}, v5, s[{S_W3SRD}:{S_W3SRD+3}], s61 offen")
    def sub_sc():
        U = 48
        for rw in range(2):
            X = 32 + 8*rw
            for i in range(8):
                a(f"v_lshlrev_b32 v{U+2*i}, 16, v{X+i}")
                a(f"v_and_b32 v{U+1+2*i}, 0xffff0000, v{X+i}")
            a(f"v_add_f32 v64, v{U}, v{U+1}")
            for i in range(2, 16):
                a(f"v_add_f32 v64, v64, v{U+i}")
            wave_reduce_add(a, 64, 65)
            a("v_mul_f32 v64, 0x3a800000, v64")
            a(f"v_sub_f32 v66, v{U}, v64")
            a("v_mul_f32 v67, v66, v66")
            for i in range(1, 16):
                a(f"v_sub_f32 v66, v{U+i}, v64")
                a(f"v_fmac_f32 v67, v66, v66")
            wave_reduce_add(a, 67, 65)
            a("v_mul_f32 v67, 0x3a800000, v67")
            a("v_cvt_pk_bf16_f32 v68, v64, v67")
            a(f"v_lshlrev_b32 v{72+2*rw}, 16, v68")
            a("v_and_b32 v67, 0xffff0000, v68")
            a("v_add_f32 v67, 0x3727c5ac, v67")
            a("v_cvt_pk_bf16_f32 v68, v67, v67")
            a("v_lshlrev_b32 v67, 16, v68")
            a("v_sqrt_f32 v67, v67")
            a("s_nop 0")
            a("v_cvt_pk_bf16_f32 v68, v67, v67")
            a(f"v_lshlrev_b32 v{73+2*rw}, 16, v68")
        a(f"s_lshl_b32 s60, s{S_WV}, 4")
        a(f"s_add_u32 s60, s60, {STX}")
        a("v_mov_b32 v5, s60")
        a("s_mov_b64 exec, 1")
        a("ds_write_b128 v5, v[72:75]")
        a("s_mov_b64 exec, -1")
    def sub_ss():
        srd(a, 28, 4, S*8, add=WS_STATS)
        a(f"v_add_u32 v3, {STX}, v26")
        a(f"s_lshl_b32 s60, s{S_RT}, 8")
        a(f"s_lshl_b32 s61, s{S_CT}, 3")
        a("s_add_u32 s60, s60, s61")
        a("s_lshl_b32 s60, s60, 3")
        a("v_add_u32 v4, s60, v26")
        a("s_mov_b64 exec, 15")
        a("ds_read_b128 v[240:243], v3")
        a("s_waitcnt lgkmcnt(0)")
        a("buffer_store_dwordx4 v[240:243], v4, s[28:31], 0 offen sc1")
        a("s_mov_b64 exec, -1")
    def sub_t2(sp, nbytes):
        srd(a, S_T2SRD, sp, nbytes)
        a(f"s_mov_b32 s{S_TO2}, 0")
    def sub_post():
        srd(a, 92, 4, S*8, add=WS_STATS)
        a(f"s_lshl_b32 s60, s{S_RT}, 11")
        a("v_lshlrev_b32 v3, 5, v2")
        a("v_add_u32 v3, s60, v3")
        a("buffer_load_dwordx4 v[240:243], v3, s[92:95], 0 offen sc1")
        a("buffer_load_dwordx4 v[244:247], v3, s[92:95], 0 offen offset:16 sc1")
    def sub_kvl():
        a(f"s_lshl_b32 s60, s{S_RT}, 7")
        a("v_and_b32 v4, 15, v2")
        a("v_lshl_add_u32 v4, v4, 3, s60")
        a(f"s_lshl_b32 s60, s{S_CT}, 6")
        a(f"s_lshl_b32 s61, s{S_WV}, 4")
        a(f"s_add_u32 s{S_S0}, s60, s61")
        a("v_lshrrev_b32 v5, 4, v2")
        a("v_lshlrev_b32 v5, 2, v5")
        a(f"v_add_u32 v5, s{S_S0}, v5")
        a("v_lshlrev_b32 v6, 11, v5")
        a("v_lshl_add_u32 v6, v4, 1, v6")
        srd(a, 28, 88, S*D*2)
        for r in range(7):
            a(f"v_add_u32 v7, {((r-3)*2048) & 0xffffffff:#x}, v6")
            a(f"buffer_load_dwordx4 a[{192+4*r}:{195+4*r}], v7, s[28:31], 0 offen")
        srd(a, 28, 80, S*D*2)
        for r in range(4):
            a(f"v_add_u32 v7, {r*2048:#x}, v6")
            a(f"buffer_load_dwordx4 a[{220+4*r}:{223+4*r}], v7, s[28:31], 0 offen")
        srd(a, 28, 82, D*4*2)
        a("v_lshlrev_b32 v5, 3, v4")
        for i in range(4):
            a(f"buffer_load_dwordx4 a[{156+4*i}:{159+4*i}], v5, s[28:31], 0 offen offset:{16*i}")
    subs = [("sl", sub_sl), ("ta", sub_ta), ("ss", sub_ss), ("setup", sub_setup), ("sc", sub_sc), ("post", sub_post), ("kvl", sub_kvl),
            ("t2v", lambda: sub_t2(80, S*D*2)), ("t2s", lambda: sub_t2(84, D*S*2)), ("t2w", lambda: sub_t2(86, F*D*2))]
    for nm, fn in subs:
        a.label(f"{name}_sub_{nm}")
        fn()
        a("s_setpc_b64 s[100:101]")
    return a.text() + kernel_desc(name, 512, 102, accum=256)
```

```python
from asmgen import *
from gen_common import *

def params(SPS):
    STG2 = SPS * 32 * 128
    NS2 = 65536 // STG2
    return STG2, NS2
G2B = 65536
CPY = 4160
UOFF = 4 * CPY
UB = 4608
WVB = UOFF + UB
EPB = WVB
XO, SO, YO = 4096, 8192, 12288
CNT = G2B + 4 * EPB
G2_LDS = CNT + 64

def gen_k2c(name="k2_kernel", SPS=4, PH=8, stamp=False, nwg=256, poll_sleep=16, prio=True):
    STG2, NS2 = params(SPS)
    LA = NS2 - 1
    NI = SPS
    a = Asm()
    a.raw(kernel_header(name))
    S_WV = 32
    a(f"s_cmp_ge_u32 s2, {nwg}")
    a(f"s_cbranch_scc1 {name}_end")
    if stamp:
        stamp_begin(a)
    a(f"s_load_dwordx2 s[4:5], s[0:1], {KA_WS}")
    a(f"s_load_dwordx4 s[52:55], s[0:1], {KA_W2}")
    a(f"s_load_dwordx2 s[50:51], s[0:1], {KA_Q}")
    a(f"s_load_dwordx4 s[44:47], s[0:1], {KA_SSMK}")
    a("v_lshrrev_b32 v1, 6, v0")
    a("v_and_b32 v2, 63, v0")
    a(f"v_mov_b32 v3, {CNT}")
    a(f"v_readfirstlane_b32 s{S_WV}, v1")
    a("v_mov_b32 v8, 0"); a("v_mov_b32 v9, 0"); a("v_mov_b32 v10, 0"); a("v_mov_b32 v11, 0")
    a("ds_write_b128 v3, v[8:11]")
    a("s_waitcnt lgkmcnt(0)")
    a("s_barrier")
    S_RT = 36; S_CT = 37
    a("s_and_b32 s56, s2, 7")
    a("s_lshr_b32 s57, s2, 3")
    a("s_and_b32 s58, s56, 3")
    a("s_lshl_b32 s58, s58, 2")
    a("s_and_b32 s59, s57, 3")
    a(f"s_add_u32 s{S_RT}, s58, s59")
    a("s_lshr_b32 s58, s56, 2")
    a("s_lshl_b32 s58, s58, 3")
    a("s_lshr_b32 s59, s57, 2")
    a(f"s_add_u32 s{S_CT}, s58, s59")
    a(f"s_cmp_ge_u32 s{S_WV}, 4")
    a(f"s_cbranch_scc1 {name}_help")
    if prio:
        a("s_setprio 2")
    HF = 64; AF = 32; ACC = 192; EP = 64
    VH0, VH1 = 8, 9
    VA = [10, 11, 12, 13]
    VD = 14
    S_HSRD = 8; S_WSRD = 12; S_OSRD = 16
    S_HO = 33; S_WO = 34; S_CNT = 35; S_DM = 38; S_SLOT = 39
    a("v_lshrrev_b32 v3, 3, v2")
    a("v_bfe_u32 v4, v2, 1, 2")
    a("v_bfe_u32 v5, v2, 4, 2")
    a("v_xor_b32 v4, v4, v5")
    a("v_and_b32 v5, 1, v2")
    a("v_lshl_add_u32 v4, v4, 1, v5")
    a("v_lshlrev_b32 v4, 4, v4")
    a(f"s_mul_i32 s56, s{S_WV}, {8*NI}")
    a("v_add_u32 v3, s56, v3")
    a("v_lshlrev_b32 v3, 11, v3")
    a(f"s_lshl_b32 s56, s{S_CT}, 7")
    a(f"v_add3_u32 v{VD}, v3, v4, s56")
    for ii in range(1, NI):
        a(f"v_add_u32 v{VD+ii}, {ii*8*2048}, v{VD}")
    a(f"s_mul_i32 s{S_SLOT}, s{S_WV}, {NI*1024}")
    a(f"s_lshl_b32 s56, s{S_RT}, 3")
    a(f"s_lshl_b32 s57, s{S_WV}, 1")
    a("s_add_u32 s56, s56, s57")
    a(f"s_mul_i32 s56, s56, {112*1024}")
    a("v_lshlrev_b32 v3, 4, v2")
    a(f"v_add_u32 v{VH0}, s56, v3")
    a(f"v_add_u32 v{VH1}, {112*1024}, v{VH0}")
    a(f"s_mov_b32 s{S_HO}, 0")
    a(f"s_mov_b32 s{S_WO}, 0")
    a(f"s_mov_b32 s{S_DM}, 0")
    a("s_waitcnt lgkmcnt(0)")
    srd(a, S_HSRD, 4, S*F*2, add=WS_H)
    srd(a, S_WSRD, 52, F*D*2)

    def dma(ii, tag):
        a(f"s_add_u32 m0, s{S_DM}, s{S_SLOT}")
        if ii:
            a(f"s_add_u32 m0, m0, {ii*1024}")
        else:
            a("s_nop 0")
        a.vmem(f"buffer_load_dwordx4 v{VD+ii}, s[{S_WSRD}:{S_WSRD+3}], s{S_WO} offen lds", tag=tag)
    def dma_adv():
        a(f"s_add_u32 s{S_WO}, s{S_WO}, {SPS*32*2048}")
        a(f"s_add_u32 s{S_DM}, s{S_DM}, {STG2}")
        a(f"s_and_b32 s{S_DM}, s{S_DM}, {STG2*NS2-1}")
    def ld_h(slot, tag):
        for bt in range(2):
            r = HF + slot*8 + bt*4
            a.vmem(f"buffer_load_dwordx4 v[{r}:{r+3}], v{VH0+bt}, s[{S_HSRD}:{S_HSRD+3}], s{S_HO} offen", tag=tag)
        a(f"s_add_u32 s{S_HO}, s{S_HO}, 1024")
    def rd_a(aset, pos, uu, dt, tag):
        for hf in range(2):
            imm = pos*STG2 + (32*uu + 16*hf)*128
            r = AF + aset*16 + dt*4 + 2*hf
            a.lds(f"ds_read_b64_tr_b16 v[{r}:{r+1}], v{VA[dt]} offset:{imm}", tag=tag)
    half = SPS // 2
    def dma_plan(uu):
        if uu < half:
            return []
        per = NI // (SPS - half)
        base = (uu - half) * per
        dts = [0, 2] if per == 2 else [1]
        return [(dts[j], base + j) for j in range(per)]
    for t in range(-max(PH, LA*SPS), 0):
        T = t // SPS; uu = t % SPS
        for (dt, ii) in dma_plan(uu):
            st = T + LA
            if st >= 0:
                dma(ii, ("d", st % NS2))
                if ii == NI - 1:
                    dma_adv()
        if t + PH >= 0:
            ld_h(t + PH, ("h", t + PH))
    a("v_lshrrev_b32 v3, 4, v2")
    a("v_bfe_u32 v4, v2, 2, 2")
    a("v_and_b32 v5, 3, v2")
    a("v_lshl_add_u32 v3, v3, 2, v4")
    a("v_bfe_u32 v4, v3, 1, 2")
    a("v_lshlrev_b32 v3, 7, v3")
    a("v_lshl_add_u32 v3, v5, 3, v3")
    for dt in range(4):
        a(f"v_xor_b32 v5, {dt}, v4")
        a(f"v_lshl_add_u32 v{VA[dt]}, v5, 5, v3")
    for i in range(32):
        a(f"v_mov_b32 v{ACC+i}, 0")
    srd(a, S_OSRD, 54, S*D*2)
    a("v_lshrrev_b32 v3, 4, v2")
    a("v_and_b32 v4, 1, v3")
    a("v_lshlrev_b32 v4, 4, v4")
    a("v_lshrrev_b32 v5, 1, v3")
    a("v_lshl_add_u32 v4, v5, 3, v4")
    a(f"s_lshl_b32 s56, s{S_CT}, 6")
    a("v_add_u32 v7, s56, v4")
    a(f"s_lshl_b32 s56, s{S_RT}, 7")
    a(f"s_lshl_b32 s57, s{S_WV}, 5")
    a("s_add_u32 s56, s56, s57")
    a("v_and_b32 v5, 15, v2")
    a("v_add_u32 v6, s56, v5")
    a("v_lshlrev_b32 v6, 11, v6")
    a("v_lshl_add_u32 v6, v7, 1, v6")
    a(f"s_mul_i32 s56, s{S_WV}, {EPB}")
    a(f"s_add_u32 s56, s56, {G2B}")
    a("v_lshlrev_b32 v18, 7, v5")
    a("v_lshl_add_u32 v18, v4, 1, v18")
    a("v_add_u32 v18, s56, v18")
    a("v_lshlrev_b32 v19, 6, v4")
    a("v_lshl_add_u32 v19, v5, 3, v19")
    a("v_add_u32 v19, s56, v19")
    a(f"v_mov_b32 v20, {CNT}")
    a("v_mov_b32 v21, 1")
    a.wait_vm(("d", 0))
    a("s_mov_b64 exec, 1")
    a("ds_add_u32 v20, v21")
    a("s_mov_b64 exec, -1")
    a("s_mov_b32 s61, 4")
    a.label(f"{name}_s0")
    a("ds_read_b32 v22, v20")
    a("s_waitcnt lgkmcnt(0)")
    a("v_readfirstlane_b32 s62, v22")
    a("s_nop 3")
    a("s_cmp_ge_u32 s62, s61")
    a(f"s_cbranch_scc0 {name}_s0")
    for dt in range(4):
        rd_a(0, 0, 0, dt, ("a", 0, dt))
    if stamp:
        stamp_mid(a, 0)
    a(f"s_mov_b32 s{S_CNT}, 7")
    a.label(f"{name}_loop")
    entry_l = list(a.lgkm); entry_v = list(a.vm)
    step = 0
    chk = 1 if SPS == 2 else 2
    for pos in range(NS2):
        nxt = (pos + 1) % NS2
        a.wait_vm(("d", nxt))
        a("s_mov_b64 exec, 1")
        a.lds("ds_add_u32 v20, v21", tag=("s", pos))
        a("s_mov_b64 exec, -1")
        a("s_add_u32 s61, s61, 4")
        for uu in range(SPS):
            if uu == chk - 1:
                a.lds("ds_read_b32 v22, v20", tag=("c", pos))
            if uu == chk:
                lbl = f"{name}_sp{pos}"
                a.wait_lgkm(("c", pos))
                a("v_readfirstlane_b32 s62, v22")
                a("s_nop 3")
                a("s_cmp_ge_u32 s62, s61")
                a(f"s_cbranch_scc1 {lbl}_ok")
                a.label(lbl)
                a("ds_read_b32 v22, v20")
                a("s_waitcnt lgkmcnt(0)")
                a("v_readfirstlane_b32 s62, v22")
                a("s_nop 3")
                a("s_cmp_ge_u32 s62, s61")
                a(f"s_cbranch_scc0 {lbl}")
                a.label(f"{lbl}_ok")
            aset = step % 2
            slot = step % PH
            npos, nuu = (pos, uu + 1) if uu < SPS - 1 else (nxt, 0)
            a.wait_vm(("h", slot))
            plan = dict(dma_plan(uu))
            for dt in range(4):
                a.wait_lgkm(("a", aset, dt))
                for bt in range(2):
                    r = HF + slot*8 + bt*4
                    c = ACC + (dt*2 + bt)*4
                    a(f"v_mfma_f32_16x16x32_bf16 v[{c}:{c+3}], v[{AF+aset*16+dt*4}:{AF+aset*16+dt*4+3}], v[{r}:{r+3}], v[{c}:{c+3}]")
                    if bt == 0:
                        rd_a(1 - aset, npos, nuu, dt, ("a", 1 - aset, dt))
                if dt in plan:
                    ii = plan[dt]
                    dma(ii, ("d", (pos + LA) % NS2))
                    if ii == NI - 1:
                        dma_adv()
            ld_h(slot, ("h", slot))
            step += 1
    assert a.lgkm == entry_l, (a.lgkm, entry_l)
    assert a.vm == entry_v, (a.vm, entry_v)
    a(f"s_sub_u32 s{S_CNT}, s{S_CNT}, 1")
    a(f"s_cmp_lg_u32 s{S_CNT}, 0")
    a(f"s_cbranch_scc1 {name}_loop")
    a.lgkm = []; a.vm = []
    if stamp:
        stamp_mid(a, 1)
    a.label(f"{name}_ho")
    a("ds_read_b32 v22, v20 offset:8")
    a("s_waitcnt lgkmcnt(0)")
    a("v_readfirstlane_b32 s62, v22")
    a("s_nop 3")
    a("s_cmp_ge_u32 s62, 4")
    a(f"s_cbranch_scc0 {name}_ho")
    AX = 32
    a("s_waitcnt vmcnt(0)")
    LX = EP
    a("v_and_b32 v5, 15, v2")
    a("v_lshlrev_b32 v5, 3, v5")
    a("v_add_u32 v5, s56, v5")
    a.lds(f"ds_read_b64 v[24:25], v5 offset:{SO}", tag="stt")
    a.lds(f"ds_read_b64 v[26:27], v5 offset:{SO+128}", tag="stt")
    k = 0
    for bt in range(2):
        for dp in range(2):
            r = LX + k*12
            a.lds(f"ds_read_b128 v[{r}:{r+3}], v18 offset:{XO + bt*2048 + dp*64}", tag=("e", k))
            a.lds(f"ds_read_b64 v[{r+8}:{r+9}], v19 offset:{YO + dp*8*256 + bt*128}", tag=("e", k))
            a.lds(f"ds_read_b64 v[{r+10}:{r+11}], v19 offset:{YO + dp*8*256 + 256 + bt*128}", tag=("e", k))
            k += 1
    a.wait_lgkm("stt")
    a("v_rcp_f32 v25, v25")
    a("v_rcp_f32 v27, v27")
    k = 0
    P = 128
    for bt in range(2):
        for dp in range(2):
            cX = ACC + ((2*dp)*2 + bt)*4
            cY = ACC + ((2*dp+1)*2 + bt)*4
            PP = P + (k % 2) * 16
            a(f"v_cvt_pk_bf16_f32 v{PP}, v{cX}, v{cX+1}")
            a(f"v_cvt_pk_bf16_f32 v{PP+1}, v{cX+2}, v{cX+3}")
            a(f"v_cvt_pk_bf16_f32 v{PP+2}, v{cY}, v{cY+1}")
            a(f"v_cvt_pk_bf16_f32 v{PP+3}, v{cY+2}, v{cY+3}")
            a("s_nop 1")
            a(f"v_permlane16_swap_b32 v{PP}, v{PP+2}")
            a(f"v_permlane16_swap_b32 v{PP+1}, v{PP+3}")
            r = LX + k*12
            a.wait_lgkm(("e", k))
            for w in range(4):
                xr, nr, yr, br = r + w, r + 4 + w, r + 8 + w, PP + w
                T = 160
                for half_ in range(2):
                    def unp(dst, src):
                        if half_ == 0:
                            a(f"v_lshlrev_b32 v{dst}, 16, v{src}")
                        else:
                            a(f"v_and_b32 v{dst}, 0xffff0000, v{src}")
                    unp(T + 1 + 4*half_, yr); unp(T + 2 + 4*half_, xr); unp(T + 3 + 4*half_, br)
                M = 24 + 2*bt
                a(f"v_sub_f32 v{T}, v{T+2}, v{M}")
                a(f"v_sub_f32 v{T+4}, v{T+6}, v{M}")
                a(f"v_cvt_pk_bf16_f32 v{T}, v{T}, v{T+4}")
                a(f"v_and_b32 v{T+4}, 0xffff0000, v{T}")
                a(f"v_lshlrev_b32 v{T}, 16, v{T}")
                a(f"v_mul_f32 v{T}, v{T}, v{M+1}")
                a(f"v_mul_f32 v{T+4}, v{T+4}, v{M+1}")
                a(f"v_cvt_pk_bf16_f32 v{T}, v{T}, v{T+4}")
                a(f"v_and_b32 v{T+4}, 0xffff0000, v{T}")
                a(f"v_lshlrev_b32 v{T}, 16, v{T}")
                a(f"v_mul_f32 v{T}, v{T}, v{T+1}")
                a(f"v_mul_f32 v{T+4}, v{T+4}, v{T+5}")
                a(f"v_cvt_pk_bf16_f32 v{T}, v{T}, v{T+4}")
                a(f"v_and_b32 v{T+4}, 0xffff0000, v{T}")
                a(f"v_lshlrev_b32 v{T}, 16, v{T}")
                a(f"v_add_f32 v{T}, v{T}, v{T+2}")
                a(f"v_add_f32 v{T+4}, v{T+4}, v{T+6}")
                a(f"v_cvt_pk_bf16_f32 v{T}, v{T}, v{T+4}")
                a(f"v_and_b32 v{T+4}, 0xffff0000, v{T}")
                a(f"v_lshlrev_b32 v{T}, 16, v{T}")
                a(f"v_add_f32 v{T}, v{T}, v{T+3}")
                a(f"v_add_f32 v{T+4}, v{T+4}, v{T+7}")
                a(f"v_cvt_pk_bf16_f32 v{PP+4+w}, v{T}, v{T+4}")
            a(f"v_add_u32 v3, {bt*16*2048 + dp*64}, v6")
            a(f"buffer_store_dwordx4 v[{PP+4}:{PP+7}], v3, s[{S_OSRD}:{S_OSRD+3}], 0 offen")
            k += 1
    if stamp:
        stamp_end(a, S_WV, 2)
    a("s_endpgm")

    a.label(f"{name}_help")
    a.lgkm = []; a.vm = []
    def lds_sync(off, target, lbl):
        a(f"v_mov_b32 v23, {CNT}")
        a("v_mov_b32 v24, 1")
        a("s_mov_b64 exec, 1")
        a(f"ds_add_u32 v23, v24 offset:{off}")
        a("s_mov_b64 exec, -1")
        if target:
            a.label(lbl)
            a(f"ds_read_b32 v25, v23 offset:{off}")
            a("s_waitcnt lgkmcnt(0)")
            a("v_readfirstlane_b32 s62, v25")
            a("s_nop 3")
            a(f"s_cmp_ge_u32 s62, {target}")
            a(f"s_cbranch_scc1 {lbl}_d")
            a("s_sleep 1")
            a(f"s_branch {lbl}")
            a.label(f"{lbl}_d")
    S_KS = 8; S_US = 12; S_YS = 16; S_DS = 20
    AFR = 64; BFR = 32; ACC = 192; NB = 8
    a(f"s_sub_u32 s33, s{S_WV}, 4")
    a("s_lshl_b32 s34, s2, 2")
    a("s_add_u32 s56, s34, s33")
    a("s_lshl_b32 s57, s56, 12")
    a(f"s_mul_i32 s59, s33, {WVB}")
    a(f"s_add_u32 s59, s59, {G2B}")
    a("v_lshlrev_b32 v3, 4, v2")
    a("s_waitcnt lgkmcnt(0)")
    a(f"s_add_u32 s{S_KS}, s44, s57")
    a(f"s_addc_u32 s{S_KS+1}, s45, 0")
    a(f"s_mov_b32 s{S_KS+2}, 4096")
    a(f"s_mov_b32 s{S_KS+3}, 0x00020000")
    a(f"s_add_u32 s58, s57, {WS_KVT}")
    a(f"s_add_u32 s{S_US}, s4, s58")
    a(f"s_addc_u32 s{S_US+1}, s5, 0")
    a(f"s_mov_b32 s{S_US+2}, 4096")
    a(f"s_mov_b32 s{S_US+3}, 0x00020000")
    for i in range(4):
        a(f"s_add_u32 m0, s59, {UOFF + i*1024}")
        a(f"s_mov_b32 s60, {i*1024}")
        a.vmem(f"buffer_load_dwordx4 v3, s[{S_US}:{S_US+3}], s60 offen lds", tag="u")
    for rr in range(5):
        r = 32 + rr*8
        a(f"v_add_u32 v4, {(rr*1024 - 32) & 0xffffffff:#x}, v3")
        a(f"v_add_u32 v5, {(rr*1024 - 16) & 0xffffffff:#x}, v3")
        a.vmem(f"buffer_load_dwordx4 v[{r}:{r+3}], v4, s[{S_KS}:{S_KS+3}], 0 offen", tag=("h", rr))
        a.vmem(f"buffer_load_dwordx4 v[{r+4}:{r+7}], v5, s[{S_KS}:{S_KS+3}], 0 offen", tag=("h", rr))
    srd(a, S_YS, 4, S*D*2, add=WS_YQ)
    srd(a, S_DS, 46, D*2)
    a("s_lshl_b32 s57, s56, 1")
    a("v_mov_b32 v4, s57")
    a.vmem(f"buffer_load_ushort v6, v4, s[{S_DS}:{S_DS+3}], 0 offen", tag="D")
    a("v_mov_b32 v8, 0"); a("v_mov_b32 v9, 0"); a("v_mov_b32 v10, 0"); a("v_mov_b32 v11, 0")
    a(f"v_add_u32 v4, s59, v3")
    a("v_cmp_gt_u32 vcc, 32, v2")
    a("s_and_saveexec_b64 s[62:63], vcc")
    a.lds(f"ds_write_b128 v4, v[8:11] offset:{UOFF+4096}", tag="z")
    a("s_mov_b64 exec, s[62:63]")
    a("v_and_b32 v14, 15, v2")
    a("v_add_u32 v14, 1, v14")
    a("v_and_b32 v5, 3, v14")
    a(f"v_mul_u32_u24 v5, {CPY}, v5")
    a("v_lshrrev_b32 v14, 2, v14")
    a("v_lshl_add_u32 v5, v14, 3, v5")
    a("v_lshrrev_b32 v7, 4, v2")
    a("v_lshl_add_u32 v5, v7, 4, v5")
    a("v_add_u32 v12, s59, v5")
    a("v_and_b32 v14, 15, v2")
    a("v_lshlrev_b32 v14, 5, v14")
    a(f"v_sub_u32 v14, {UOFF+480}, v14")
    a("v_lshl_add_u32 v14, v7, 4, v14")
    a("v_add_u32 v13, s59, v14")
    for i in range(32):
        a(f"v_mov_b32 v{ACC+i}, 0")
    a.lgkm = []
    for rr in range(5):
        r = 32 + rr*8
        a.wait_vm(("h", rr))
        T = 72 + (rr % 2) * 16
        for i in range(5):
            a(f"v_alignbit_b32 v{T+i}, v{r+i+1}, v{r+i}, 16")
        if rr == 4:
            a("v_cmp_gt_u32 vcc, 4, v2")
            a("s_and_saveexec_b64 s[62:63], vcc")
        off = rr*1024
        for i in range(4):
            a(f"v_mov_b32 v{T+8+i}, v{r+1+i}")
            a(f"v_mov_b32 v{T+12+i}, v{T+1+i}")
        a.lds(f"ds_write_b128 v4, v[{r}:{r+3}] offset:{off}", tag="c")
        a.lds(f"ds_write_b128 v4, v[{T}:{T+3}] offset:{CPY+off}", tag="c")
        a.lds(f"ds_write_b128 v4, v[{T+8}:{T+11}] offset:{2*CPY+off}", tag="c")
        a.lds(f"ds_write_b128 v4, v[{T+12}:{T+15}] offset:{3*CPY+off}", tag="c")
        if rr == 4:
            a("s_mov_b64 exec, s[62:63]")
    a.wait_vm("u", "D")
    a.wait_all_lgkm()
    if stamp:
        stamp_mid(a, 0)
    def rd_A(slot, m):
        r = AFR + 4*slot
        a.lds(f"ds_read_b64 v[{r}:{r+1}], v12 offset:{64*m}", tag=("A", m))
        a.lds(f"ds_read_b64 v[{r+2}:{r+3}], v12 offset:{64*m+8}", tag=("A", m))
    def rd_B(idx, n):
        r = BFR + 4*(idx % NB)
        a.lds(f"ds_read_b128 v[{r}:{r+3}], v13 offset:{64*(63-n)}", tag=("B", idx))
    bidx = 0
    for ph in range(2):
        m0 = 32*ph
        ns = list(range(64)) if ph == 0 else list(range(32))
        work = []
        for n in ns:
            ms = [m for m in range(m0, m0+32) if (m + n) % 8 == 7 and m + n <= 63]
            if ms:
                work.append((n, ms))
        a_loaded = set()
        PB = 4
        for w in range(min(PB, len(work))):
            rd_B(bidx + w, work[w][0])
            for m in work[w][1]:
                if m not in a_loaded:
                    rd_A(m - m0, m); a_loaded.add(m)
        for w, (n, ms) in enumerate(work):
            for mi, m in enumerate(ms):
                c = (m + n - 7)//8
                a.wait_lgkm(("B", bidx + w), ("A", m))
                br = BFR + 4*((bidx + w) % NB)
                ar = AFR + 4*(m - m0)
                a(f"v_mfma_f32_16x16x32_bf16 v[{ACC+4*c}:{ACC+4*c+3}], v[{ar}:{ar+3}], v[{br}:{br+3}], v[{ACC+4*c}:{ACC+4*c+3}]")
                if mi == 0 and w + PB < len(work):
                    rd_B(bidx + w + PB, work[w + PB][0])
                    for m2 in work[w + PB][1]:
                        if m2 not in a_loaded:
                            rd_A(m2 - m0, m2); a_loaded.add(m2)
        bidx += len(work)
    if stamp:
        stamp_mid(a, 1)
    a("v_lshlrev_b32 v6, 16, v6")
    a("v_and_b32 v4, 15, v2")
    a("v_lshlrev_b32 v4, 5, v4")
    a("v_lshl_add_u32 v4, v7, 3, v4")
    a(f"v_sub_u32 v5, {UOFF + 4088 - 512*7}, v4")
    a("v_add_u32 v5, s59, v5")
    a("v_add_u32 v14, s59, v4")
    for c in range(8):
        a.lds(f"ds_read_b64 v[{32+2*c}:{33+2*c}], v5 offset:{512*(7-c)}", tag=("k", c))
    a("s_nop 7")
    a("s_nop 7")
    for c in range(8):
        a.wait_lgkm(("k", c))
        K = 32 + 2*c; A = ACC + 4*c; T = 64 + (c % 2) * 16
        a(f"v_and_b32 v{T}, 0xffff0000, v{K+1}")
        a(f"v_lshlrev_b32 v{T+1}, 16, v{K+1}")
        a(f"v_and_b32 v{T+2}, 0xffff0000, v{K}")
        a(f"v_lshlrev_b32 v{T+3}, 16, v{K}")
        for r in range(4):
            a(f"v_mul_f32 v{T+r}, v{T+r}, v6")
        a(f"v_cvt_pk_bf16_f32 v{T+4}, v{T}, v{T+1}")
        a(f"v_cvt_pk_bf16_f32 v{T+5}, v{T+2}, v{T+3}")
        a(f"v_cvt_pk_bf16_f32 v{T+6}, v{A}, v{A+1}")
        a(f"v_cvt_pk_bf16_f32 v{T+7}, v{A+2}, v{A+3}")
        for p in range(2):
            a(f"v_lshlrev_b32 v{T}, 16, v{T+4+p}")
            a(f"v_and_b32 v{T+1}, 0xffff0000, v{T+4+p}")
            a(f"v_lshlrev_b32 v{T+2}, 16, v{T+6+p}")
            a(f"v_and_b32 v{T+3}, 0xffff0000, v{T+6+p}")
            a(f"v_add_f32 v{T}, v{T}, v{T+2}")
            a(f"v_add_f32 v{T+1}, v{T+1}, v{T+3}")
            a(f"v_cvt_pk_bf16_f32 v{T+8+p}, v{T}, v{T+1}")
        a.lds(f"ds_write_b64 v14, v[{T+8}:{T+9}] offset:{512*c}", tag="y")
    a.wait_all_lgkm()
    lds_sync(4, 4, f"{name}_ts")
    a("v_subrev_u32 v15, 256, v0")
    a("v_lshlrev_b32 v4, 2, v15")
    a(f"v_add_u32 v4, {G2B}, v4")
    a(f"v_add_u32 v7, {2*WVB}, v4")
    for i in range(4):
        for ch in range(4):
            a.lds(f"ds_read_b32 v{32+4*i+ch}, v{4 if ch < 2 else 7} offset:{(ch%2)*WVB + i*1024}", tag=("t", i))
    a("s_mov_b32 s40, 0x05040100")
    a("s_mov_b32 s41, 0x07060302")
    a("s_lshl_b32 s42, s2, 14")
    a("v_lshlrev_b32 v5, 4, v15")
    a("v_add_u32 v5, s42, v5")
    for i in range(4):
        a.wait_lgkm(("t", i))
        r = 32 + 4*i; T = 64 + 4*i
        a(f"v_perm_b32 v{T}, v{r+1}, v{r}, s40")
        a(f"v_perm_b32 v{T+1}, v{r+3}, v{r+2}, s40")
        a(f"v_perm_b32 v{T+2}, v{r+1}, v{r}, s41")
        a(f"v_perm_b32 v{T+3}, v{r+3}, v{r+2}, s41")
        a(f"v_add_u32 v6, {i*4096}, v5")
        a(f"buffer_store_dwordx4 v[{T}:{T+3}], v6, s[16:19], 0 offen sc1")
    a("s_waitcnt vmcnt(0)")
    srd(a, 40, 4, 4096, add=WS_FLAGS)
    a("s_lshl_b32 s56, s2, 2")
    a("s_add_u32 s56, s56, s33")
    a("s_lshl_b32 s56, s56, 2")
    a("v_mov_b32 v4, s56")
    a("v_mov_b32 v5, 1")
    a("s_mov_b64 exec, 1")
    a("buffer_store_dword v5, v4, s[40:43], 0 offen sc1")
    a("s_mov_b64 exec, -1")
    a(f"s_lshl_b32 s38, s{S_RT}, 7")
    a("s_lshl_b32 s39, s33, 5")
    a("s_add_u32 s38, s38, s39")
    a(f"s_lshl_b32 s36, s{S_CT}, 7")
    a("v_lshrrev_b32 v4, 3, v2")
    a("v_add_u32 v4, s38, v4")
    a("v_lshlrev_b32 v4, 11, v4")
    a("v_and_b32 v5, 7, v2")
    a("v_lshl_add_u32 v4, v5, 4, v4")
    a("v_add_u32 v4, s36, v4")
    srd(a, 24, 50, S*D*2)
    srd(a, 28, 4, S*8, add=WS_STATS)
    for i in range(4):
        a(f"s_add_u32 m0, s59, {XO + i*1024}")
        a(f"s_mov_b32 s60, {i*8*2048}")
        a(f"buffer_load_dwordx4 v4, s[24:27], s60 offen lds")
    a("s_lshl_b32 s56, s38, 3")
    a("v_add_u32 v7, s56, v3")
    a(f"s_add_u32 m0, s59, {SO}")
    a("s_nop 0")
    a("buffer_load_dwordx4 v7, s[28:31], 0 offen lds")
    a("s_lshl_b32 s56, s36, 1")
    a("v_lshlrev_b32 v19, 2, v2")
    a("v_add_u32 v19, s56, v19")
    a("s_cmp_eq_u32 s33, 0")
    a(f"s_cbranch_scc0 {name}_wait_lds")
    a("s_mov_b32 s58, 100000")
    a.label(f"{name}_poll")
    a("buffer_load_dword v20, v19, s[40:43], 0 offen sc1")
    a("s_waitcnt vmcnt(0)")
    a("v_cmp_ne_u32 vcc, 0, v20")
    a("s_nop 3")
    a("s_cmp_eq_u64 vcc, -1")
    a(f"s_cbranch_scc1 {name}_polled1")
    a(f"s_sleep {poll_sleep}")
    a("s_sub_u32 s58, s58, 1")
    a("s_cmp_lg_u32 s58, 0")
    a(f"s_cbranch_scc1 {name}_poll")
    a.label(f"{name}_polled1")
    lds_sync(12, 0, None)
    a(f"s_branch {name}_polled2")
    a.label(f"{name}_wait_lds")
    a(f"v_mov_b32 v23, {CNT}")
    a.label(f"{name}_wl")
    a("ds_read_b32 v25, v23 offset:12")
    a("s_waitcnt lgkmcnt(0)")
    a("v_readfirstlane_b32 s62, v25")
    a("s_nop 3")
    a("s_cmp_ge_u32 s62, 1")
    a(f"s_cbranch_scc1 {name}_polled2")
    a("s_sleep 8")
    a(f"s_branch {name}_wl")
    a.label(f"{name}_polled2")
    a("v_lshrrev_b32 v4, 4, v2")
    a("v_lshlrev_b32 v4, 14, v4")
    a("v_and_b32 v5, 15, v2")
    a("v_lshl_add_u32 v4, v5, 4, v4")
    a("s_lshl_b32 s56, s36, 11")
    a("s_lshl_b32 s57, s38, 3")
    a("s_add_u32 s56, s56, s57")
    a("v_add_u32 v21, s56, v4")
    a("v_add_u32 v22, s59, v3")
    for i in range(4):
        a(f"s_mov_b32 s60, {i*4*16384}")
        a(f"buffer_load_dwordx4 v[{64+4*i}:{67+4*i}], v21, s[16:19], s60 offen sc1")
    a("s_waitcnt vmcnt(0)")
    for i in range(4):
        a(f"ds_write_b128 v22, v[{64+4*i}:{67+4*i}] offset:{YO + i*1024}")
    a("s_waitcnt lgkmcnt(0)")
    lds_sync(8, 0, None)
    if stamp:
        a("s_waitcnt lgkmcnt(0)")
        stamp_end(a, S_WV, 2)
    a.label(f"{name}_end")
    a("s_endpgm")
    return a.text() + kernel_desc(name, 224, 96)
```

```python
from asmgen import *
from gen_common import *

STG = 32768
XB = 16384
WB = 8192
NS = 4
RING = STG * NS
CSOFF = RING
STALL = RING + 1024
LDS_BYTES = RING + 1024 + 2048
NH = 32

def gen_k1a(name="k1_kernel", PD=3, stamp=False, it_poll=4, it_post=2, poll_max=200000, nt0=5):
    a = Asm()
    a.raw(kernel_header(name))
    AF = 32; GA = 64; ONES = 192; BFA = 128; CSA = 192
    VA0, VA1, VB = 8, 9, 10
    VD = 12
    S_XSRD = 8; S_WSRD = 12; S_HSRD = 28
    S_WV = 32; S_XO = 33; S_WO = 34; S_CNT = 35
    S_SLOT = list(range(36, 44))
    S_RT = 44; S_CT = 45; S_RD = 47; S_DM = 48; S_DELTA = 49; S_OK = 50
    a("s_cmp_ge_u32 s2, 256")
    a(f"s_cbranch_scc1 {name}_end")
    if stamp:
        stamp_begin(a)
    a(f"s_load_dwordx2 s[4:5], s[0:1], {KA_WS}")
    a(f"s_load_dwordx4 s[52:55], s[0:1], {KA_W1}")
    a(f"s_load_dwordx4 s[92:95], s[0:1], {KA_Q}")
    a(f"s_load_dwordx2 s[90:91], s[0:1], {KA_DBG}")
    a("v_lshrrev_b32 v1, 6, v0")
    a("v_and_b32 v2, 63, v0")
    a("v_lshlrev_b32 v26, 4, v2")
    a(f"v_readfirstlane_b32 s{S_WV}, v1")
    a(f"s_cmp_lt_u32 s2, {NH}")
    a(f"s_cbranch_scc1 {name}_helper")
    a(f"s_sub_u32 s58, s2, {NH}")
    a("s_and_b32 s56, s58, 7")
    a("s_lshr_b32 s57, s58, 3")
    a("s_and_b32 s58, s56, 1")
    a("s_lshl_b32 s58, s58, 2")
    a("s_and_b32 s59, s57, 3")
    a(f"s_add_u32 s{S_RT}, s58, s59")
    a("s_lshr_b32 s58, s56, 1")
    a("s_mul_i32 s58, s58, 7")
    a("s_lshr_b32 s59, s57, 2")
    a(f"s_add_u32 s{S_CT}, s58, s59")
    a("v_lshrrev_b32 v3, 4, v2")
    a("v_sub_u32 v3, 0, v3")
    a("v_xor_b32 v3, v3, v2")
    a("v_and_b32 v3, 3, v3")
    a("v_lshrrev_b32 v4, 2, v2")
    a(f"s_lshl_b32 s56, s{S_RT}, 8")
    a(f"s_lshl_b32 s57, s{S_WV}, 6")
    a("s_add_u32 s56, s56, s57")
    a("v_add_u32 v4, s56, v4")
    a("v_lshlrev_b32 v4, 11, v4")
    a(f"v_lshl_add_u32 v{VD}, v3, 4, v4")
    for sl in range(4):
        if sl:
            a(f"v_add_u32 v{VD+sl}, {sl*32768}, v{VD}")
        a(f"s_lshl_b32 s{S_SLOT[sl]}, s{S_WV}, 12")
        a(f"s_add_u32 s{S_SLOT[sl]}, s{S_SLOT[sl]}, {sl*1024}")
    a("v_lshrrev_b32 v3, 4, v2")
    a("v_bfe_u32 v4, v2, 2, 2")
    a("v_and_b32 v5, 3, v2")
    a(f"s_and_b32 s56, s{S_WV}, 1")
    a("s_lshl_b32 s56, s56, 4")
    a("v_add_u32 v4, s56, v4")
    a("v_mul_u32_u24 v4, 0x1c00, v4")
    a(f"s_lshl_b32 s56, s{S_CT}, 8")
    a("v_lshl_add_u32 v4, v3, 6, v4")
    a("v_add_u32 v4, s56, v4")
    for sl in range(4):
        x = 2*((sl >> 1) & 1)
        a(f"v_xor_b32 v6, {x}, v5")
        a("v_lshlrev_b32 v6, 4, v6")
        a(f"v_add_u32 v6, {sl*4*7168}, v6")
        a(f"v_add_u32 v{VD+4+sl}, v4, v6")
        a(f"s_lshl_b32 s{S_SLOT[4+sl]}, s{S_WV}, 12")
        a(f"s_add_u32 s{S_SLOT[4+sl]}, s{S_SLOT[4+sl]}, {XB + sl*1024}")
    a("s_waitcnt lgkmcnt(0)")
    srd(a, S_XSRD, 92, S*D*2)
    a(f"s_cmp_lt_u32 s{S_WV}, 2")
    a(f"s_cselect_b32 s{S_WSRD}, s52, s54")
    a(f"s_cselect_b32 s{S_WSRD+1}, s53, s55")
    a(f"s_mov_b32 s{S_WSRD+2}, {D*F*2}")
    a(f"s_mov_b32 s{S_WSRD+3}, 0x00020000")
    def dma_ld(sl, tag):
        if sl < 4:
            a.vmem(f"buffer_load_dwordx4 v{VD+sl}, s[{S_XSRD}:{S_XSRD+3}], s{S_XO} offen lds", tag=tag)
        else:
            a.vmem(f"buffer_load_dwordx4 v{VD+sl}, s[{S_WSRD}:{S_WSRD+3}], s{S_WO} offen lds", tag=tag)
    a.vm = []
    for st in range(NS - 1):
        a(f"s_mov_b32 s{S_XO}, {st*64}")
        a(f"s_mov_b32 s{S_WO}, {st*32*7168}")
        for sl in range(8):
            a(f"s_add_u32 m0, s{S_SLOT[sl]}, {st*STG}")
            a("s_nop 0")
            dma_ld(sl, ("d", st))
    a(f"s_mov_b32 s{S_XO}, {(NS-1)*64}")
    a(f"s_mov_b32 s{S_WO}, {(NS-1)*32*7168}")
    a(f"s_mov_b32 s{S_DM}, {(NS-1)*STG}")
    a("v_lshrrev_b32 v3, 4, v2")
    a("v_bfe_u32 v4, v2, 2, 2")
    a("v_and_b32 v5, 3, v2")
    a("v_lshlrev_b32 v6, 6, v4")
    a("v_lshl_add_u32 v6, v5, 3, v6")
    a("v_lshl_add_u32 v6, v3, 11, v6")
    a(f"s_and_b32 s56, s{S_WV}, 1")
    a("s_lshl_b32 s56, s56, 9")
    a("v_add_u32 v6, s56, v6")
    a("v_and_b32 v7, 1, v3")
    a(f"v_lshl_add_u32 v{VA0}, v7, 5, v6")
    a("v_xor_b32 v7, 1, v7")
    a(f"v_lshl_add_u32 v{VA1}, v7, 5, v6")
    a("v_lshrrev_b32 v6, 2, v2")
    a("v_sub_u32 v6, 0, v6")
    a("v_xor_b32 v6, v6, v3")
    a("v_and_b32 v6, 3, v6")
    a("v_and_b32 v7, 15, v2")
    a(f"s_lshr_b32 s56, s{S_WV}, 1")
    a("s_lshl_b32 s56, s56, 7")
    a("v_add_u32 v7, s56, v7")
    a("v_lshlrev_b32 v7, 6, v7")
    a(f"v_lshl_add_u32 v{VB}, v6, 4, v7")
    for i in range(4):
        a(f"v_mov_b32 v{ONES+i}, 0x3f803f80")
    srd(a, 16, 52, D*F*2)
    srd(a, 20, 54, D*F*2)
    a(f"s_sub_u32 s60, s2, {NH}")
    a("s_lshl_b32 s60, s60, 2")
    a(f"s_add_u32 s60, s60, s{S_WV}")
    a("s_lshl_b32 s60, s60, 9")
    a("v_lshlrev_b32 v23, 7, v2")
    a("v_add_u32 v23, s60, v23")
    a("v_mov_b32 v24, 0x80000000")
    a("v_cmp_gt_u32 vcc, 4, v2")
    a(f"s_mov_b32 s24, {96*7168}")
    a("v_cndmask_b32 v23, v24, v23, vcc")
    for i in range(nt0):
        a(f"buffer_load_dword v25, v23, s[16:19], s24 offen")
        a(f"buffer_load_dword v25, v23, s[20:23], s24 offen")
        a(f"s_add_u32 s24, s24, {64*7168}")
    a(f"s_mov_b32 s{S_RD}, 0")
    a(f"s_mov_b32 s{S_OK}, 0")
    a("v_mov_b32 v31, 0")
    a("s_mov_b32 s56, s90"); a("s_mov_b32 s57, s91"); a("s_mov_b32 s58, 256"); a("s_mov_b32 s59, 0x00020000")
    a(f"s_lshl_b32 s60, s{S_RT}, 2")
    a("v_mov_b32 v27, s60")
    a.vm += [("u", 0)]*(2*nt0)
    pro_vm = list(a.vm)
    a(f"s_cmp_ge_u32 s{S_WV}, 2")
    a(f"s_cbranch_scc1 {name}_p1")

    order = []
    for j in range(4):
        order.append((0, j)); order.append((1, j))
    def rd_a1(ai, hf, tag):
        m, j = order[ai]
        base = VA0 if (j & 1) == 0 else VA1
        imm = XB + m*WB + hf*1024 + (j >> 1)*256
        a.lds(f"ds_read_b64_tr_b16 v[{AF+4*ai+2*hf}:{AF+4*ai+2*hf+1}], v{base} offset:{imm}", tag=tag)
    def rd_b(bs, bt, tag):
        r = BFA + 32*bs + 4*bt
        a.lds(f"ds_read_b128 a[{r}:{r+3}], v{VB} offset:{bt*1024}", tag=tag)
    def acc(m, j, bt):
        i = (j*8 + bt)*4
        return f"v[{GA+i}:{GA+i+3}]" if m == 0 else f"a[{i}:{i+3}]"
    def once(lbl, it, fn):
        a(f"s_cmp_lg_u32 s{S_CNT}, {it}")
        a(f"s_cbranch_scc1 {lbl}")
        fn()
        a.label(lbl)
    def post_loads():
        srd(a, 92, 4, S*8, add=WS_STATS)
        a(f"s_lshl_b32 s60, s{S_RT}, 11")
        a("v_lshlrev_b32 v3, 5, v2")
        a("v_add_u32 v3, s60, v3")
        a("buffer_load_dwordx4 v[240:243], v3, s[92:95], 0 offen sc1")
        a("buffer_load_dwordx4 v[244:247], v3, s[92:95], 0 offen offset:16 sc1")

    def path(ws):
        lbl = f"{name}_p{ws}"
        a.label(lbl)
        a.lgkm = []; a.vm = list(pro_vm)
        a.wait_vm(("d", 0))
        a("s_barrier")
        for ai in range(PD):
            rd_a1(ai, 0, ("a", 0, ai)); rd_a1(ai, 1, ("a", 0, ai))
        b_pos = []
        a.lgkm = []
        bi = 0
        for g in (5, 6, 7):
            a.lgkm += [("a", 0, g - 5), ("a", 0, g - 5)]
            for _ in range(3 if g < 7 else 2):
                rd_b(0, bi, ("b", 0, bi)); a.lgkm.pop(); a.lgkm.append(("b", 0, bi)); bi += 1
        a("s_waitcnt lgkmcnt(0)")
        model_l = list(a.lgkm)
        if stamp:
            stamp_mid(a, 0)
        def stage(ph, peel):
            a.wait_vm(("d", ph + 1))
            a("s_barrier")
            if ph == 0 and not peel and ws == 1:
                def poll():
                    a(f"s_cmp_lg_u32 s{S_WV}, 3")
                    a(f"s_cbranch_scc1 {lbl}_o6")
                    a("buffer_load_dword v31, v27, s[56:59], 0 offen sc1")
                once(f"{lbl}_o6", it_poll, poll)
                def post():
                    a(f"s_cmp_lg_u32 s{S_WV}, 3")
                    a(f"s_cbranch_scc1 {lbl}_o8")
                    a("v_readfirstlane_b32 s60, v31")
                    a("s_nop 3")
                    a("s_cmp_lg_u32 s60, 0xffff")
                    a(f"s_cbranch_scc1 {lbl}_o8")
                    post_loads()
                    a(f"s_mov_b32 s{S_OK}, 1")
                once(f"{lbl}_o8", it_post, post)
            gaps = [[] for _ in range(64)]
            for g in range(8):
                ga = g + PD
                tgt = (ga, ph) if ga < 8 else (ga - 8, 1 - ph)
                gaps[8*g + 0].append(lambda t=tgt: rd_a1(t[0], 0, ("a", t[1], t[0])))
                gaps[8*g + 1].append(lambda t=tgt: rd_a1(t[0], 1, ("a", t[1], t[0])))
            bi = 0
            for g in (5, 6, 7):
                for k in range(3 if g < 7 else 2):
                    gaps[8*g + 2 + k].append(lambda bi=bi: rd_b(1 - ph, bi, ("b", 1 - ph, bi)))
                    bi += 1
            for i in range(8):
                gaps[8*i + 5].append(lambda i=i: a(f"s_add_u32 m0, s{S_DM}, s{S_SLOT[i]}"))
                gaps[8*i + 6].append(lambda i=i: dma_ld(i, ("d", ph + 3)))
            def adv():
                a(f"s_add_u32 s{S_XO}, s{S_XO}, 64")
                a(f"s_add_u32 s{S_WO}, s{S_WO}, {32*7168}")
                a(f"s_add_u32 s{S_DM}, s{S_DM}, {STG}")
                a(f"s_and_b32 s{S_DM}, s{S_DM}, {STG*NS-1}")
            gaps[63].append(adv)
            sr = 16 if ph == 0 else 20
            gaps[62].append(lambda sr=sr: a.vmem(f"buffer_load_dword v25, v23, s[{sr}:{sr+3}], s24 offen", tag=("t", 0)))
            if ph == 1:
                gaps[63].append(lambda: a(f"s_add_u32 s24, s24, {64*7168}"))
            def rd_adv1():
                a(f"s_add_u32 s{S_DELTA}, s{S_RD}, {STG}")
                a(f"s_and_b32 s62, s{S_DELTA}, {STG*NS-1}")
                a(f"s_sub_u32 s{S_DELTA}, s62, s{S_RD}")
                a(f"s_mov_b32 s{S_RD}, s62")
            gaps[8*3 + 3].append(rd_adv1)
            gaps[8*4 + 2].append(lambda: a(f"v_add_u32 v{VA0}, s{S_DELTA}, v{VA0}"))
            gaps[8*4 + 3].append(lambda: a(f"v_add_u32 v{VA1}, s{S_DELTA}, v{VA1}"))
            gaps[8*4 + 4].append(lambda: a(f"v_add_u32 v{VB}, s{S_DELTA}, v{VB}"))
            first = peel and ph == 0
            for g in range(8):
                m, j = order[g]
                tags = [("a", ph, g)]
                if g == 0:
                    tags += [("b", ph, bt) for bt in range(8)]
                a.wait_lgkm(*tags)
                for bt in range(8):
                    r = BFA + 32*ph + 4*bt
                    a(f"v_mfma_f32_16x16x32_bf16 {acc(m,j,bt)}, v[{AF+4*g}:{AF+4*g+3}], a[{r}:{r+3}], {'0' if first else acc(m,j,bt)}")
                    if bt == 7 and (g >> 2) == ws:
                        c = CSA + 4*(g & 3)
                        a(f"v_mfma_f32_16x16x32_bf16 a[{c}:{c+3}], v[{AF+4*g}:{AF+4*g+3}], v[{ONES}:{ONES+3}], {'0' if first else 'a[%d:%d]' % (c, c+3)}")
                    for f in gaps[8*g + bt]:
                        f()
        a.lgkm = list(model_l)
        stage(0, True); stage(1, True)
        a.vm = [(t, k - 2 if t == "d" else k) for (t, k) in a.vm]
        a(f"s_mov_b32 s{S_CNT}, 15")
        a.label(f"{lbl}_loop")
        entry_l = list(a.lgkm); entry_v = list(a.vm)
        stage(0, False); stage(1, False)
        assert a.lgkm == entry_l, (a.lgkm, entry_l)
        def strip(q):
            q = list(q)
            while q and q[0][0] != "d":
                q.pop(0)
            return q
        assert strip([(t, k - 2 if t == "d" else k) for (t, k) in a.vm]) == strip(entry_v), (a.vm, entry_v)
        a(f"s_sub_u32 s{S_CNT}, s{S_CNT}, 1")
        a(f"s_cmp_lg_u32 s{S_CNT}, 0")
        a(f"s_cbranch_scc1 {lbl}_loop")
        a.lgkm = []; a.vm = []
        if stamp:
            stamp_mid(a, 1)
        a("v_lshrrev_b32 v3, 4, v2")
        a("v_lshlrev_b32 v3, 4, v3")
        a(f"s_and_b32 s60, s{S_WV}, 1")
        a("s_lshl_b32 s60, s60, 9")
        a(f"s_add_u32 s60, s60, {CSOFF}")
        a("v_add_u32 v3, s60, v3")
        a("s_nop 7")
        a("s_mov_b32 s60, 0x00010001")
        a("s_mov_b32 s61, 0x00010001")
        a("s_mov_b64 exec, s[60:61]")
        for k in range(4):
            g = 4*ws + k
            a(f"ds_write_b128 v3, a[{CSA+4*k}:{CSA+4*k+3}] offset:{g*64}")
        a("s_mov_b64 exec, -1")
        if ws == 1:
            a(f"s_cmp_lg_u32 s{S_WV}, 3")
            a(f"s_cbranch_scc1 {name}_epi")
            a(f"s_cmp_eq_u32 s{S_OK}, 1")
            a(f"s_cbranch_scc1 {lbl}_fb")
            a(f"s_mov_b32 s62, {poll_max}")
            a.label(f"{lbl}_poll")
            a("buffer_load_dword v31, v27, s[56:59], 0 offen sc1")
            a("s_waitcnt vmcnt(0)")
            a("v_readfirstlane_b32 s60, v31")
            a("s_nop 3")
            a("s_cmp_eq_u32 s60, 0xffff")
            a(f"s_cbranch_scc1 {lbl}_pd")
            a("s_sleep 8")
            a("s_sub_u32 s62, s62, 1")
            a("s_cmp_lg_u32 s62, 0")
            a(f"s_cbranch_scc1 {lbl}_poll")
            a.label(f"{lbl}_pd")
            post_loads()
            a.label(f"{lbl}_fb")
            a("s_waitcnt vmcnt(0)")
            a(f"v_lshlrev_b32 v3, 5, v2")
            a(f"v_add_u32 v3, {STALL}, v3")
            a("ds_write_b128 v3, v[240:243]")
            a("ds_write_b128 v3, v[244:247] offset:16")
        else:
            a(f"s_branch {name}_epi")
    path(0)
    path(1)
    a.label(f"{name}_epi")
    a("s_waitcnt lgkmcnt(0)")
    a("s_barrier")
    if stamp: a("s_memtime s[92:93]")
    srd(a, S_HSRD, 4, S*F*2, add=WS_H)
    a("v_lshrrev_b32 v7, 4, v2")
    a("v_lshlrev_b32 v3, 4, v7")
    a(f"s_and_b32 s60, s{S_WV}, 1")
    a("s_lshl_b32 s60, s60, 9")
    a(f"s_add_u32 s60, s60, {CSOFF}")
    a("v_add_u32 v3, s60, v3")
    CS = 32
    for g in range(8):
        a(f"ds_read_b128 v[{CS+4*g}:{CS+4*g+3}], v3 offset:{g*64}")
    a("v_and_b32 v5, 15, v2")
    a(f"s_lshr_b32 s60, s{S_WV}, 1")
    a("s_lshl_b32 s60, s60, 10")
    a(f"s_add_u32 s60, s60, {STALL}")
    a("v_lshl_add_u32 v5, v5, 3, s60")
    ST = 208
    for bt in range(8):
        a(f"ds_read_b64 v[{ST+2*bt}:{ST+2*bt+1}], v5 offset:{bt*128}")
    a(f"s_lshl_b32 s54, s{S_RT}, 4")
    a(f"s_lshr_b32 s55, s{S_WV}, 1")
    a("s_lshl_b32 s55, s55, 3")
    a("s_add_u32 s54, s54, s55")
    a("s_mul_i32 s54, s54, 112")
    a(f"s_lshl_b32 s55, s{S_CT}, 2")
    a("s_add_u32 s54, s54, s55")
    a(f"s_and_b32 s55, s{S_WV}, 1")
    a("s_lshl_b32 s55, s55, 1")
    a("s_add_u32 s54, s54, s55")
    a("s_lshl_b32 s54, s54, 10")
    a("v_add_u32 v3, s54, v26")
    a("s_mov_b32 s56, 0xbfb8aa3b")
    a("s_waitcnt lgkmcnt(0)")
    def hcalc(j, bt, T, O):
        G = GA + (j*8 + bt)*4
        U = (j*8 + bt)*4
        C1 = CS + 4*(2*j); C3 = CS + 4*(2*j + 1)
        NM, C1S, I2 = 8, 10, 12
        for r in range(4):
            a(f"v_accvgpr_read_b32 v{T+4+r}, a{U+r}")
        for r in (0, 2):
            a(f"v_pk_fma_f32 v[{G+r}:{G+r+1}], v[{C1+r}:{C1+r+1}], v[{NM}:{NM+1}], v[{G+r}:{G+r+1}] op_sel_hi:[1,0,1]")
        for r in (0, 2):
            a(f"v_pk_mul_f32 v[{T+r}:{T+r+1}], v[{G+r}:{G+r+1}], v[{C1S}:{C1S+1}] op_sel_hi:[1,0]")
        for r in range(4):
            a(f"v_exp_f32 v{T+r}, v{T+r}")
        for r in (0, 2):
            a(f"v_pk_fma_f32 v[{T+4+r}:{T+5+r}], v[{C3+r}:{C3+r+1}], v[{NM}:{NM+1}], v[{T+4+r}:{T+5+r}] op_sel_hi:[1,0,1]")
        for r in (0, 2):
            a(f"v_pk_fma_f32 v[{T+r}:{T+r+1}], v[{T+r}:{T+r+1}], v[{I2}:{I2+1}], v[{I2}:{I2+1}] op_sel_hi:[1,0,0]")
        for r in (0, 2):
            a(f"v_pk_mul_f32 v[{T+4+r}:{T+5+r}], v[{T+4+r}:{T+5+r}], v[{G+r}:{G+r+1}]")
        for r in range(4):
            a(f"v_rcp_f32 v{T+r}, v{T+r}")
        a("s_nop 0")
        for r in (0, 2):
            a(f"v_pk_mul_f32 v[{T+4+r}:{T+5+r}], v[{T+4+r}:{T+5+r}], v[{T+r}:{T+r+1}]")
        a(f"v_cvt_pk_bf16_f32 v{O}, v{T+4}, v{T+5}")
        a(f"v_cvt_pk_bf16_f32 v{O+1}, v{T+6}, v{T+7}")
    k = 0
    for bt in range(8):
        a(f"v_sub_f32 v8, 0, v{ST+2*bt}")
        a(f"v_rcp_f32 v10, v{ST+2*bt+1}")
        a(f"v_mul_f32 v12, v{ST+2*bt+1}, v{ST+2*bt+1}")
        a("v_mul_f32 v10, s56, v10")
        for p in range(2):
            O = 240 + (k % 2) * 4
            hcalc(2*p, bt, 224, O)
            hcalc(2*p+1, bt, 232, O + 2)
            a(f"buffer_store_dwordx4 v[{O}:{O+3}], v3, s[{S_HSRD}:{S_HSRD+3}], 0 offen offset:{p*1024}")
            k += 1
        if bt < 7:
            a(f"v_add_u32 v3, {112*1024}, v3")
    if stamp:
        a("s_memtime s[94:95]")
        a("s_waitcnt lgkmcnt(0)")
        a("s_sub_u32 s96, s94, s92")
        a("s_mov_b32 s94, 0")
        a("s_sub_u32 s92, s92, s70")
        stamp_end(a, S_WV, 1)
        a("v_mov_b32 v12, s92"); a("v_mov_b32 v13, s94")
        a("buffer_store_dwordx2 v[12:13], v5, s[76:79], 0 offen offset:24")
        a("v_mov_b32 v14, s96")
        a("buffer_store_dword v14, v5, s[76:79], 0 offen offset:20")
    a("s_endpgm")

    a.label(f"{name}_helper")
    a.lgkm = []; a.vm = []
    a(f"s_load_dwordx4 s[80:83], s[0:1], {KA_V}")
    a(f"s_load_dwordx2 s[84:85], s[0:1], {KA_SSMK}")
    a(f"s_load_dwordx2 s[86:87], s[0:1], {KA_W2}")
    a("s_lshl_b32 s33, s2, 2")
    a(f"s_add_u32 s33, s33, s{S_WV}")
    a("s_lshl_b32 s34, s33, 13")
    a("v_lshlrev_b32 v3, 7, v2")
    a("v_add_u32 v3, s34, v3")
    a("s_waitcnt lgkmcnt(0)")
    srd(a, 8, 92, S*D*2)
    srd(a, 12, 52, D*F*2)
    srd(a, 16, 54, D*F*2)
    a("s_lshl_b32 s35, s33, 4")
    a("s_lshl_b32 s36, s35, 11")
    a("v_add_u32 v4, s36, v26")
    def touch(sr, n):
        for t in range(n):
            a(f"s_mov_b32 s36, {t*8192*128}")
            a(f"buffer_load_dword v62, v3, s[{sr}:{sr+3}], s36 offen")
    for i in range(16):
        a(f"v_add_u32 v6, {i*2048}, v4")
        a(f"buffer_load_dwordx4 v[{64+8*i}:{67+8*i}], v6, s[8:11], 0 offen")
        a(f"buffer_load_dwordx4 v[{68+8*i}:{71+8*i}], v6, s[8:11], 0 offen offset:1024")
    srd(a, 20, 94, S*D*2)
    srd(a, 24, 80, S*D*2)
    touch(20, 4); touch(24, 4)
    a("v_mov_b32 v20, 0"); a("v_mov_b32 v21, 0")
    for i in range(16):
        a(f"s_waitcnt vmcnt({2*(15-i) + 8})")
        X = 64 + 8*i; U = 32
        for t in range(8):
            a(f"v_lshlrev_b32 v{U+2*t}, 16, v{X+t}")
            a(f"v_and_b32 v{U+1+2*t}, 0xffff0000, v{X+t}")
        a(f"v_add_f32 v48, v{U}, v{U+1}")
        for t in range(2, 16):
            a(f"v_add_f32 v48, v48, v{U+t}")
        wave_reduce_add(a, 48, 49)
        a("v_mul_f32 v48, 0x3a800000, v48")
        a(f"v_sub_f32 v50, v{U}, v48")
        a("v_mul_f32 v51, v50, v50")
        for t in range(1, 16):
            a(f"v_sub_f32 v50, v{U+t}, v48")
            a(f"v_fmac_f32 v51, v50, v50")
        wave_reduce_add(a, 51, 49)
        a("v_mul_f32 v51, 0x3a800000, v51")
        a("v_cvt_pk_bf16_f32 v52, v48, v51")
        a("v_lshlrev_b32 v48, 16, v52")
        a("v_and_b32 v51, 0xffff0000, v52")
        a("v_add_f32 v51, 0x3727c5ac, v51")
        a("v_cvt_pk_bf16_f32 v52, v51, v51")
        a("v_lshlrev_b32 v51, 16, v52")
        a("v_sqrt_f32 v51, v51")
        a("s_nop 0")
        a("v_cvt_pk_bf16_f32 v52, v51, v51")
        a("v_lshlrev_b32 v51, 16, v52")
        a(f"v_cmp_eq_u32 vcc, {i}, v2")
        a("s_nop 1")
        a("v_cndmask_b32 v20, v20, v48, vcc")
        a("v_cndmask_b32 v21, v21, v51, vcc")
    srd(a, 28, 4, S*8, add=WS_STATS)
    a("s_lshl_b32 s36, s35, 3")
    a("v_lshlrev_b32 v6, 3, v2")
    a("v_add_u32 v6, s36, v6")
    a("s_mov_b64 exec, 0xffff")
    a("buffer_store_dwordx2 v[20:21], v6, s[28:31], 0 offen sc1")
    a("s_mov_b64 exec, -1")
    a("s_waitcnt vmcnt(0)")
    a("s_mov_b32 s56, s90"); a("s_mov_b32 s57, s91"); a("s_mov_b32 s58, 256"); a("s_mov_b32 s59, 0x00020000")
    a("s_lshr_b32 s36, s2, 2")
    a("s_lshl_b32 s36, s36, 2")
    a("v_mov_b32 v6, s36")
    a("s_and_b32 s36, s33, 15")
    a("s_lshl_b32 s36, 1, s36")
    a("v_mov_b32 v7, s36")
    a("s_mov_b64 exec, 1")
    a("buffer_atomic_or v7, v6, s[56:59], 0 offen sc1")
    a("s_mov_b64 exec, -1")
    if stamp:
        stamp_mid(a, 0)
    srd(a, 8, 84, D*S*2)
    srd(a, 12, 86, F*D*2)
    srd(a, 28, 4, 4096, add=WS_FLAGS)
    a("s_lshl_b32 s36, s33, 5")
    a("v_lshlrev_b32 v6, 2, v2")
    a("v_add_u32 v6, s36, v6")
    a("v_mov_b32 v7, 0")
    a("s_mov_b64 exec, 0xff")
    a("buffer_store_dword v7, v6, s[28:31], 0 offen")
    a("s_mov_b64 exec, -1")
    srd(a, 16, 82, D*4*2)
    srd(a, 28, 4, D*S*2, add=WS_KVT)
    a("s_lshl_b32 s37, s2, 6")
    a(f"s_lshl_b32 s38, s{S_WV}, 4")
    a("s_add_u32 s37, s37, s38")
    a("v_lshrrev_b32 v5, 4, v2")
    a("v_lshlrev_b32 v5, 2, v5")
    a("v_add_u32 v5, s37, v5")
    a("v_lshlrev_b32 v8, 11, v5")
    a("v_and_b32 v9, 15, v2")
    a("v_lshlrev_b32 v9, 4, v9")
    a("v_add_u32 v8, v8, v9")
    a("v_lshlrev_b32 v9, 2, v9")
    a("v_and_b32 v10, 15, v2")
    a("v_lshlrev_b32 v10, 10, v10")
    a("v_lshrrev_b32 v5, 4, v2")
    a("v_lshlrev_b32 v5, 3, v5")
    a("v_sub_u32 v10, v10, v5")
    a(f"s_lshl_b32 s38, s{S_WV}, 5")
    a("s_sub_u32 s38, 120, s38")
    a("v_add_u32 v10, s38, v10")
    a(f"s_lshl_b32 s38, s{S_WV}, 12")
    a("v_add_u32 v11, s38, v26")
    a("v_lshrrev_b32 v12, 3, v2")
    a(f"s_lshl_b32 s38, s{S_WV}, 5")
    a("v_add_u32 v12, s38, v12")
    a("v_lshlrev_b32 v12, 12, v12")
    a("v_and_b32 v13, 7, v2")
    a("v_lshl_add_u32 v12, v13, 4, v12")
    a("s_lshl_b32 s38, s2, 7")
    a("s_sub_u32 s38, 3968, s38")
    a("v_add_u32 v12, s38, v12")
    def kv_loads(B):
        for r in range(7):
            a(f"v_add_u32 v7, {((r-3)*2048) & 0xffffffff:#x}, v8")
            a(f"buffer_load_dwordx4 v[{B+4*r}:{B+4*r+3}], v7, s[20:23], s40 offen")
        for r in range(4):
            a(f"v_add_u32 v7, {r*2048:#x}, v8")
            a(f"buffer_load_dwordx4 v[{B+28+4*r}:{B+31+4*r}], v7, s[24:27], s40 offen")
        for i in range(4):
            a(f"buffer_load_dwordx4 v[{B+44+4*i}:{B+47+4*i}], v9, s[16:19], s41 offen offset:{16*i}")
    a("s_mov_b32 s40, 0"); a("s_mov_b32 s41, 0"); a("s_mov_b32 s42, 0"); a("s_mov_b32 s43, 0")
    a("s_mov_b32 s39, 8")
    kv_loads(64)
    for _ in range(6):
        a("buffer_load_dword v62, v3, s[8:11], s43 offen")
    a.label(f"{name}_kv")
    a("s_waitcnt vmcnt(6)")
    for i in range(60):
        a(f"v_mov_b32 v{128+i}, v{64+i}")
    a("s_add_u32 s40, s40, 256")
    a("s_add_u32 s41, s41, 1024")
    a("s_cmp_eq_u32 s39, 1")
    a(f"s_cbranch_scc1 {name}_kv2")
    kv_loads(64)
    a.label(f"{name}_kv2")
    a("buffer_load_dword v62, v3, s[12:15], s43 offen")
    a("buffer_load_dword v62, v3, s[8:11], s43 offen")
    a(f"s_add_u32 s43, s43, {8192*128}")
    for p in range(4):
        B = 128; R = 192
        W = R; K = R + 8; t = R + 22; O = [R+24+i for i in range(8)]
        s0_, s1_, s2_, s3_ = B+44+4*p, B+45+4*p, B+46+4*p, B+47+4*p
        a(f"v_lshlrev_b32 v{W+0}, 16, v{s0_}");        a(f"v_lshlrev_b32 v{W+1}, 16, v{s2_}")
        a(f"v_and_b32 v{W+2}, 0xffff0000, v{s0_}");    a(f"v_and_b32 v{W+3}, 0xffff0000, v{s2_}")
        a(f"v_lshlrev_b32 v{W+4}, 16, v{s1_}");        a(f"v_lshlrev_b32 v{W+5}, 16, v{s3_}")
        a(f"v_and_b32 v{W+6}, 0xffff0000, v{s1_}");    a(f"v_and_b32 v{W+7}, 0xffff0000, v{s3_}")
        for r in range(7):
            a(f"v_lshlrev_b32 v{K+2*r}, 16, v{B+4*r+p}")
            a(f"v_and_b32 v{K+2*r+1}, 0xffff0000, v{B+4*r+p}")
        for i in range(4):
            a(f"v_pk_mul_f32 v[{t}:{t+1}], v[{K+2*i}:{K+2*i+1}], v[{W+6}:{W+7}]")
            a(f"v_pk_fma_f32 v[{t}:{t+1}], v[{K+2*(i+1)}:{K+2*(i+1)+1}], v[{W+4}:{W+5}], v[{t}:{t+1}]")
            a(f"v_pk_fma_f32 v[{t}:{t+1}], v[{K+2*(i+2)}:{K+2*(i+2)+1}], v[{W+2}:{W+3}], v[{t}:{t+1}]")
            a(f"v_pk_fma_f32 v[{t}:{t+1}], v[{K+2*(i+3)}:{K+2*(i+3)+1}], v[{W}:{W+1}], v[{t}:{t+1}]")
            a(f"v_cvt_pk_bf16_f32 v{t}, v{t}, v{t+1}")
            a(f"v_and_b32 v{t+1}, 0xffff0000, v{t}")
            a(f"v_lshlrev_b32 v{t}, 16, v{t}")
            a(f"v_lshlrev_b32 v14, 16, v{B+28+4*i+p}")
            a(f"v_and_b32 v15, 0xffff0000, v{B+28+4*i+p}")
            a(f"v_mul_f32 v{O[i]}, v{t}, v14")
            a(f"v_mul_f32 v{O[4+i]}, v{t+1}, v15")
        Q = R + 32 + 4*(p % 2)
        a(f"v_cvt_pk_bf16_f32 v{Q}, v{O[3]}, v{O[2]}")
        a(f"v_cvt_pk_bf16_f32 v{Q+1}, v{O[1]}, v{O[0]}")
        a(f"v_cvt_pk_bf16_f32 v{Q+2}, v{O[7]}, v{O[6]}")
        a(f"v_cvt_pk_bf16_f32 v{Q+3}, v{O[5]}, v{O[4]}")
        a(f"ds_write_b64 v10, v[{Q}:{Q+1}] offset:{(2*p)*128}")
        a(f"ds_write_b64 v10, v[{Q+2}:{Q+3}] offset:{(2*p+1)*128}")
    a("s_waitcnt lgkmcnt(0)")
    a("s_barrier")
    for i in range(4):
        a(f"ds_read_b128 v[{240+4*i}:{243+4*i}], v11 offset:{i*1024}")
    a("s_waitcnt lgkmcnt(0)")
    a("s_barrier")
    for i in range(4):
        a(f"v_add_u32 v7, {i*8*4096}, v12")
        a(f"buffer_store_dwordx4 v[{240+4*i}:{243+4*i}], v7, s[28:31], s42 offen")
    a(f"s_add_u32 s42, s42, {128*4096}")
    a("s_sub_u32 s39, s39, 1")
    a("s_cmp_lg_u32 s39, 0")
    a(f"s_cbranch_scc1 {name}_kv")
    if stamp:
        stamp_mid(a, 1)
        stamp_end(a, S_WV, 1)
    a.label(f"{name}_end")
    a("s_endpgm")
    return a.text() + kernel_desc(name, 512, 102, accum=256)
```

```python
from asmgen import *
from gen_common import *

def params(SPS):
    STG2 = SPS * 32 * 128
    NS2 = 65536 // STG2
    return STG2, NS2
G2B = 65536
CPY = 4160
UOFF = 4 * CPY
UB = 4608
WVB = UOFF + UB
EPB = WVB
XO, SO, YO = 4096, 8192, 12288
CNT = G2B + 4 * EPB
G2_LDS = CNT + 64

def gen_k2c(name="k2_kernel", SPS=4, PH=8, stamp=False, nwg=256, poll_sleep=16, prio=False, cprio=0, xmap=0):
    STG2, NS2 = params(SPS)
    LA = NS2 - 1
    NI = SPS
    a = Asm()
    a.raw(kernel_header(name))
    S_WV = 32
    a(f"s_cmp_ge_u32 s2, {nwg}")
    a(f"s_cbranch_scc1 {name}_end")
    if stamp:
        stamp_begin(a)
    a(f"s_load_dwordx2 s[4:5], s[0:1], {KA_WS}")
    a(f"s_load_dwordx4 s[52:55], s[0:1], {KA_W2}")
    a(f"s_load_dwordx2 s[50:51], s[0:1], {KA_Q}")
    a(f"s_load_dwordx4 s[44:47], s[0:1], {KA_SSMK}")
    a("v_lshrrev_b32 v1, 6, v0")
    a("v_and_b32 v2, 63, v0")
    a(f"v_mov_b32 v3, {CNT}")
    a(f"v_readfirstlane_b32 s{S_WV}, v1")
    a("v_mov_b32 v8, 0"); a("v_mov_b32 v9, 0"); a("v_mov_b32 v10, 0"); a("v_mov_b32 v11, 0")
    a("ds_write_b128 v3, v[8:11]")
    a("s_waitcnt lgkmcnt(0)")
    a("s_barrier")
    S_RT = 36; S_CT = 37
    a("s_and_b32 s56, s2, 7")
    a("s_lshr_b32 s57, s2, 3")
    if xmap == 0:
        a("s_and_b32 s58, s56, 3")
        a("s_lshl_b32 s58, s58, 2")
        a("s_and_b32 s59, s57, 3")
        a(f"s_add_u32 s{S_RT}, s58, s59")
        a("s_lshr_b32 s58, s56, 2")
        a("s_lshl_b32 s58, s58, 3")
        a("s_lshr_b32 s59, s57, 2")
        a(f"s_add_u32 s{S_CT}, s58, s59")
    else:
        a("s_lshl_b32 s58, s56, 1")
        a("s_and_b32 s59, s57, 1")
        a(f"s_add_u32 s{S_RT}, s58, s59")
        a(f"s_lshr_b32 s{S_CT}, s57, 1")
    a(f"s_cmp_ge_u32 s{S_WV}, 4")
    a(f"s_cbranch_scc1 {name}_help")
    if prio:
        a("s_setprio 2")
    HF = 64; AF = 32; ACC = 192; EP = 64
    VH0, VH1 = 8, 9
    VA = [10, 11, 12, 13]
    VD = 14
    S_HSRD = 8; S_WSRD = 12; S_OSRD = 16
    S_HO = 33; S_WO = 34; S_CNT = 35; S_DM = 38; S_SLOT = 39
    a("v_lshrrev_b32 v3, 3, v2")
    a("v_bfe_u32 v4, v2, 1, 2")
    a("v_bfe_u32 v5, v2, 4, 2")
    a("v_xor_b32 v4, v4, v5")
    a("v_and_b32 v5, 1, v2")
    a("v_lshl_add_u32 v4, v4, 1, v5")
    a("v_lshlrev_b32 v4, 4, v4")
    a(f"s_mul_i32 s56, s{S_WV}, {8*NI}")
    a("v_add_u32 v3, s56, v3")
    a("v_lshlrev_b32 v3, 11, v3")
    a(f"s_lshl_b32 s56, s{S_CT}, 7")
    a(f"v_add3_u32 v{VD}, v3, v4, s56")
    for ii in range(1, NI):
        a(f"v_add_u32 v{VD+ii}, {ii*8*2048}, v{VD}")
    a(f"s_mul_i32 s{S_SLOT}, s{S_WV}, {NI*1024}")
    a(f"s_lshl_b32 s56, s{S_RT}, 3")
    a(f"s_lshl_b32 s57, s{S_WV}, 1")
    a("s_add_u32 s56, s56, s57")
    a(f"s_mul_i32 s56, s56, {112*1024}")
    a("v_lshlrev_b32 v3, 4, v2")
    a(f"v_add_u32 v{VH0}, s56, v3")
    a(f"v_add_u32 v{VH1}, {112*1024}, v{VH0}")
    a(f"s_mov_b32 s{S_HO}, 0")
    a(f"s_mov_b32 s{S_WO}, 0")
    a(f"s_mov_b32 s{S_DM}, 0")
    a("s_waitcnt lgkmcnt(0)")
    srd(a, S_HSRD, 4, S*F*2, add=WS_H)
    srd(a, S_WSRD, 52, F*D*2)

    def dma(ii, tag):
        a(f"s_add_u32 m0, s{S_DM}, s{S_SLOT}")
        if ii:
            a(f"s_add_u32 m0, m0, {ii*1024}")
        else:
            a("s_nop 0")
        a.vmem(f"buffer_load_dwordx4 v{VD+ii}, s[{S_WSRD}:{S_WSRD+3}], s{S_WO} offen lds", tag=tag)
    def dma_adv():
        a(f"s_add_u32 s{S_WO}, s{S_WO}, {SPS*32*2048}")
        a(f"s_add_u32 s{S_DM}, s{S_DM}, {STG2}")
        a(f"s_and_b32 s{S_DM}, s{S_DM}, {STG2*NS2-1}")
    def ld_h(slot, tag):
        for bt in range(2):
            r = HF + slot*8 + bt*4
            a.vmem(f"buffer_load_dwordx4 v[{r}:{r+3}], v{VH0+bt}, s[{S_HSRD}:{S_HSRD+3}], s{S_HO} offen", tag=tag)
        a(f"s_add_u32 s{S_HO}, s{S_HO}, 1024")
    def rd_a(aset, pos, uu, dt, tag):
        for hf in range(2):
            imm = pos*STG2 + (32*uu + 16*hf)*128
            r = AF + aset*16 + dt*4 + 2*hf
            a.lds(f"ds_read_b64_tr_b16 v[{r}:{r+1}], v{VA[dt]} offset:{imm}", tag=tag)
    half = SPS // 2
    def dma_plan(uu):
        if uu < half:
            return []
        per = NI // (SPS - half)
        base = (uu - half) * per
        dts = [0, 2] if per == 2 else [1]
        return [(dts[j], base + j) for j in range(per)]
    for t in range(-max(PH, LA*SPS), 0):
        T = t // SPS; uu = t % SPS
        for (dt, ii) in dma_plan(uu):
            st = T + LA
            if st >= 0:
                dma(ii, ("d", st % NS2))
                if ii == NI - 1:
                    dma_adv()
        if t + PH >= 0:
            ld_h(t + PH, ("h", t + PH))
    a("v_lshrrev_b32 v3, 4, v2")
    a("v_bfe_u32 v4, v2, 2, 2")
    a("v_and_b32 v5, 3, v2")
    a("v_lshl_add_u32 v3, v3, 2, v4")
    a("v_bfe_u32 v4, v3, 1, 2")
    a("v_lshlrev_b32 v3, 7, v3")
    a("v_lshl_add_u32 v3, v5, 3, v3")
    for dt in range(4):
        a(f"v_xor_b32 v5, {dt}, v4")
        a(f"v_lshl_add_u32 v{VA[dt]}, v5, 5, v3")
    for i in range(32):
        a(f"v_mov_b32 v{ACC+i}, 0")
    srd(a, S_OSRD, 54, S*D*2)
    a("v_lshrrev_b32 v3, 4, v2")
    a("v_and_b32 v4, 1, v3")
    a("v_lshlrev_b32 v4, 4, v4")
    a("v_lshrrev_b32 v5, 1, v3")
    a("v_lshl_add_u32 v4, v5, 3, v4")
    a(f"s_lshl_b32 s56, s{S_CT}, 6")
    a("v_add_u32 v7, s56, v4")
    a(f"s_lshl_b32 s56, s{S_RT}, 7")
    a(f"s_lshl_b32 s57, s{S_WV}, 5")
    a("s_add_u32 s56, s56, s57")
    a("v_and_b32 v5, 15, v2")
    a("v_add_u32 v6, s56, v5")
    a("v_lshlrev_b32 v6, 11, v6")
    a("v_lshl_add_u32 v6, v7, 1, v6")
    a(f"s_mul_i32 s56, s{S_WV}, {EPB}")
    a(f"s_add_u32 s56, s56, {G2B}")
    a("v_lshlrev_b32 v18, 7, v5")
    a("v_lshl_add_u32 v18, v4, 1, v18")
    a("v_add_u32 v18, s56, v18")
    a("v_lshlrev_b32 v19, 6, v4")
    a("v_lshl_add_u32 v19, v5, 3, v19")
    a("v_add_u32 v19, s56, v19")
    a(f"v_mov_b32 v20, {CNT}")
    a("v_mov_b32 v21, 1")
    a.wait_vm(("d", 0))
    a("s_mov_b64 exec, 1")
    a("ds_add_u32 v20, v21")
    a("s_mov_b64 exec, -1")
    a("s_mov_b32 s61, 4")
    a.label(f"{name}_s0")
    a("ds_read_b32 v22, v20")
    a("s_waitcnt lgkmcnt(0)")
    a("v_readfirstlane_b32 s62, v22")
    a("s_nop 3")
    a("s_cmp_ge_u32 s62, s61")
    a(f"s_cbranch_scc0 {name}_s0")
    for dt in range(4):
        rd_a(0, 0, 0, dt, ("a", 0, dt))
    if stamp:
        stamp_mid(a, 0)
    a(f"s_mov_b32 s{S_CNT}, 7")
    a.label(f"{name}_loop")
    entry_l = list(a.lgkm); entry_v = list(a.vm)
    step = 0
    chk = 1 if SPS == 2 else 2
    for pos in range(NS2):
        nxt = (pos + 1) % NS2
        a.wait_vm(("d", nxt))
        a("s_mov_b64 exec, 1")
        a.lds("ds_add_u32 v20, v21", tag=("s", pos))
        a("s_mov_b64 exec, -1")
        a("s_add_u32 s61, s61, 4")
        for uu in range(SPS):
            if uu == chk - 1:
                a.lds("ds_read_b32 v22, v20", tag=("c", pos))
            if uu == chk:
                lbl = f"{name}_sp{pos}"
                a.wait_lgkm(("c", pos))
                a("v_readfirstlane_b32 s62, v22")
                a("s_nop 3")
                a("s_cmp_ge_u32 s62, s61")
                a(f"s_cbranch_scc1 {lbl}_ok")
                a.label(lbl)
                a("ds_read_b32 v22, v20")
                a("s_waitcnt lgkmcnt(0)")
                a("v_readfirstlane_b32 s62, v22")
                a("s_nop 3")
                a("s_cmp_ge_u32 s62, s61")
                a(f"s_cbranch_scc0 {lbl}")
                a.label(f"{lbl}_ok")
            aset = step % 2
            slot = step % PH
            npos, nuu = (pos, uu + 1) if uu < SPS - 1 else (nxt, 0)
            a.wait_vm(("h", slot))
            plan = dict(dma_plan(uu))
            for dt in range(4):
                a.wait_lgkm(("a", aset, dt))
                for bt in range(2):
                    r = HF + slot*8 + bt*4
                    c = ACC + (dt*2 + bt)*4
                    a(f"v_mfma_f32_16x16x32_bf16 v[{c}:{c+3}], v[{AF+aset*16+dt*4}:{AF+aset*16+dt*4+3}], v[{r}:{r+3}], v[{c}:{c+3}]")
                    if bt == 0:
                        rd_a(1 - aset, npos, nuu, dt, ("a", 1 - aset, dt))
                if dt in plan:
                    ii = plan[dt]
                    dma(ii, ("d", (pos + LA) % NS2))
                    if ii == NI - 1:
                        dma_adv()
            ld_h(slot, ("h", slot))
            step += 1
    assert a.lgkm == entry_l, (a.lgkm, entry_l)
    assert a.vm == entry_v, (a.vm, entry_v)
    a(f"s_sub_u32 s{S_CNT}, s{S_CNT}, 1")
    a(f"s_cmp_lg_u32 s{S_CNT}, 0")
    a(f"s_cbranch_scc1 {name}_loop")
    a.lgkm = []; a.vm = []
    if stamp:
        stamp_mid(a, 1)
    a.label(f"{name}_ho")
    a("ds_read_b32 v22, v20 offset:8")
    a("s_waitcnt lgkmcnt(0)")
    a("v_readfirstlane_b32 s62, v22")
    a("s_nop 3")
    a("s_cmp_ge_u32 s62, 4")
    a(f"s_cbranch_scc0 {name}_ho")
    AX = 32
    a("s_waitcnt vmcnt(0)")
    LX = EP
    a("v_and_b32 v5, 15, v2")
    a("v_lshlrev_b32 v5, 3, v5")
    a("v_add_u32 v5, s56, v5")
    a.lds(f"ds_read_b64 v[24:25], v5 offset:{SO}", tag="stt")
    a.lds(f"ds_read_b64 v[26:27], v5 offset:{SO+128}", tag="stt")
    k = 0
    for bt in range(2):
        for dp in range(2):
            r = LX + k*12
            a.lds(f"ds_read_b128 v[{r}:{r+3}], v18 offset:{XO + bt*2048 + dp*64}", tag=("e", k))
            a.lds(f"ds_read_b64 v[{r+8}:{r+9}], v19 offset:{YO + dp*8*256 + bt*128}", tag=("e", k))
            a.lds(f"ds_read_b64 v[{r+10}:{r+11}], v19 offset:{YO + dp*8*256 + 256 + bt*128}", tag=("e", k))
            k += 1
    a.wait_lgkm("stt")
    a("v_rcp_f32 v25, v25")
    a("v_rcp_f32 v27, v27")
    k = 0
    P = 128
    for bt in range(2):
        for dp in range(2):
            cX = ACC + ((2*dp)*2 + bt)*4
            cY = ACC + ((2*dp+1)*2 + bt)*4
            PP = P + (k % 2) * 16
            a(f"v_cvt_pk_bf16_f32 v{PP}, v{cX}, v{cX+1}")
            a(f"v_cvt_pk_bf16_f32 v{PP+1}, v{cX+2}, v{cX+3}")
            a(f"v_cvt_pk_bf16_f32 v{PP+2}, v{cY}, v{cY+1}")
            a(f"v_cvt_pk_bf16_f32 v{PP+3}, v{cY+2}, v{cY+3}")
            a("s_nop 1")
            a(f"v_permlane16_swap_b32 v{PP}, v{PP+2}")
            a(f"v_permlane16_swap_b32 v{PP+1}, v{PP+3}")
            r = LX + k*12
            a.wait_lgkm(("e", k))
            for w in range(4):
                xr, nr, yr, br = r + w, r + 4 + w, r + 8 + w, PP + w
                T = 160
                for half_ in range(2):
                    def unp(dst, src):
                        if half_ == 0:
                            a(f"v_lshlrev_b32 v{dst}, 16, v{src}")
                        else:
                            a(f"v_and_b32 v{dst}, 0xffff0000, v{src}")
                    unp(T + 1 + 4*half_, yr); unp(T + 2 + 4*half_, xr); unp(T + 3 + 4*half_, br)
                M = 24 + 2*bt
                a(f"v_sub_f32 v{T}, v{T+2}, v{M}")
                a(f"v_sub_f32 v{T+4}, v{T+6}, v{M}")
                a(f"v_cvt_pk_bf16_f32 v{T}, v{T}, v{T+4}")
                a(f"v_and_b32 v{T+4}, 0xffff0000, v{T}")
                a(f"v_lshlrev_b32 v{T}, 16, v{T}")
                a(f"v_mul_f32 v{T}, v{T}, v{M+1}")
                a(f"v_mul_f32 v{T+4}, v{T+4}, v{M+1}")
                a(f"v_cvt_pk_bf16_f32 v{T}, v{T}, v{T+4}")
                a(f"v_and_b32 v{T+4}, 0xffff0000, v{T}")
                a(f"v_lshlrev_b32 v{T}, 16, v{T}")
                a(f"v_mul_f32 v{T}, v{T}, v{T+1}")
                a(f"v_mul_f32 v{T+4}, v{T+4}, v{T+5}")
                a(f"v_cvt_pk_bf16_f32 v{T}, v{T}, v{T+4}")
                a(f"v_and_b32 v{T+4}, 0xffff0000, v{T}")
                a(f"v_lshlrev_b32 v{T}, 16, v{T}")
                a(f"v_add_f32 v{T}, v{T}, v{T+2}")
                a(f"v_add_f32 v{T+4}, v{T+4}, v{T+6}")
                a(f"v_cvt_pk_bf16_f32 v{T}, v{T}, v{T+4}")
                a(f"v_and_b32 v{T+4}, 0xffff0000, v{T}")
                a(f"v_lshlrev_b32 v{T}, 16, v{T}")
                a(f"v_add_f32 v{T}, v{T}, v{T+3}")
                a(f"v_add_f32 v{T+4}, v{T+4}, v{T+7}")
                a(f"v_cvt_pk_bf16_f32 v{PP+4+w}, v{T}, v{T+4}")
            a(f"v_add_u32 v3, {bt*16*2048 + dp*64}, v6")
            a(f"buffer_store_dwordx4 v[{PP+4}:{PP+7}], v3, s[{S_OSRD}:{S_OSRD+3}], 0 offen")
            k += 1
    if stamp:
        stamp_end(a, S_WV, 2)
    a("s_endpgm")

    a.label(f"{name}_help")
    a.lgkm = []; a.vm = []
    def lds_sync(off, target, lbl):
        a(f"v_mov_b32 v23, {CNT}")
        a("v_mov_b32 v24, 1")
        a("s_mov_b64 exec, 1")
        a(f"ds_add_u32 v23, v24 offset:{off}")
        a("s_mov_b64 exec, -1")
        if target:
            a.label(lbl)
            a(f"ds_read_b32 v25, v23 offset:{off}")
            a("s_waitcnt lgkmcnt(0)")
            a("v_readfirstlane_b32 s62, v25")
            a("s_nop 3")
            a(f"s_cmp_ge_u32 s62, {target}")
            a(f"s_cbranch_scc1 {lbl}_d")
            a("s_sleep 1")
            a(f"s_branch {lbl}")
            a.label(f"{lbl}_d")
    if cprio:
        a(f"s_setprio {cprio}")
    S_KS = 8; S_US = 12; S_YS = 16; S_DS = 20
    AFR = 64; BFR = 32; ACC = 192; NB = 8
    a(f"s_sub_u32 s33, s{S_WV}, 4")
    a("s_lshl_b32 s34, s2, 2")
    a("s_add_u32 s56, s34, s33")
    a("s_lshl_b32 s57, s56, 12")
    a(f"s_mul_i32 s59, s33, {WVB}")
    a(f"s_add_u32 s59, s59, {G2B}")
    a("v_lshlrev_b32 v3, 4, v2")
    a("s_waitcnt lgkmcnt(0)")
    a(f"s_add_u32 s{S_KS}, s44, s57")
    a(f"s_addc_u32 s{S_KS+1}, s45, 0")
    a(f"s_mov_b32 s{S_KS+2}, 4096")
    a(f"s_mov_b32 s{S_KS+3}, 0x00020000")
    a(f"s_add_u32 s58, s57, {WS_KVT}")
    a(f"s_add_u32 s{S_US}, s4, s58")
    a(f"s_addc_u32 s{S_US+1}, s5, 0")
    a(f"s_mov_b32 s{S_US+2}, 4096")
    a(f"s_mov_b32 s{S_US+3}, 0x00020000")
    for i in range(4):
        a(f"s_add_u32 m0, s59, {UOFF + i*1024}")
        a(f"s_mov_b32 s60, {i*1024}")
        a.vmem(f"buffer_load_dwordx4 v3, s[{S_US}:{S_US+3}], s60 offen lds", tag="u")
    for rr in range(5):
        r = 32 + rr*8
        a(f"v_add_u32 v4, {(rr*1024 - 32) & 0xffffffff:#x}, v3")
        a(f"v_add_u32 v5, {(rr*1024 - 16) & 0xffffffff:#x}, v3")
        a.vmem(f"buffer_load_dwordx4 v[{r}:{r+3}], v4, s[{S_KS}:{S_KS+3}], 0 offen", tag=("h", rr))
        a.vmem(f"buffer_load_dwordx4 v[{r+4}:{r+7}], v5, s[{S_KS}:{S_KS+3}], 0 offen", tag=("h", rr))
    srd(a, S_YS, 4, S*D*2, add=WS_YQ)
    srd(a, S_DS, 46, D*2)
    a("s_lshl_b32 s57, s56, 1")
    a("v_mov_b32 v4, s57")
    a.vmem(f"buffer_load_ushort v6, v4, s[{S_DS}:{S_DS+3}], 0 offen", tag="D")
    a("v_mov_b32 v8, 0"); a("v_mov_b32 v9, 0"); a("v_mov_b32 v10, 0"); a("v_mov_b32 v11, 0")
    a(f"v_add_u32 v4, s59, v3")
    a("v_cmp_gt_u32 vcc, 32, v2")
    a("s_and_saveexec_b64 s[62:63], vcc")
    a.lds(f"ds_write_b128 v4, v[8:11] offset:{UOFF+4096}", tag="z")
    a("s_mov_b64 exec, s[62:63]")
    a("v_and_b32 v14, 15, v2")
    a("v_add_u32 v14, 1, v14")
    a("v_and_b32 v5, 3, v14")
    a(f"v_mul_u32_u24 v5, {CPY}, v5")
    a("v_lshrrev_b32 v14, 2, v14")
    a("v_lshl_add_u32 v5, v14, 3, v5")
    a("v_lshrrev_b32 v7, 4, v2")
    a("v_lshl_add_u32 v5, v7, 4, v5")
    a("v_add_u32 v12, s59, v5")
    a("v_and_b32 v14, 15, v2")
    a("v_lshlrev_b32 v14, 5, v14")
    a(f"v_sub_u32 v14, {UOFF+480}, v14")
    a("v_lshl_add_u32 v14, v7, 4, v14")
    a("v_add_u32 v13, s59, v14")
    for i in range(32):
        a(f"v_mov_b32 v{ACC+i}, 0")
    a.lgkm = []
    for rr in range(5):
        r = 32 + rr*8
        a.wait_vm(("h", rr))
        T = 72 + (rr % 2) * 16
        for i in range(5):
            a(f"v_alignbit_b32 v{T+i}, v{r+i+1}, v{r+i}, 16")
        if rr == 4:
            a("v_cmp_gt_u32 vcc, 4, v2")
            a("s_and_saveexec_b64 s[62:63], vcc")
        off = rr*1024
        for i in range(4):
            a(f"v_mov_b32 v{T+8+i}, v{r+1+i}")
            a(f"v_mov_b32 v{T+12+i}, v{T+1+i}")
        a.lds(f"ds_write_b128 v4, v[{r}:{r+3}] offset:{off}", tag="c")
        a.lds(f"ds_write_b128 v4, v[{T}:{T+3}] offset:{CPY+off}", tag="c")
        a.lds(f"ds_write_b128 v4, v[{T+8}:{T+11}] offset:{2*CPY+off}", tag="c")
        a.lds(f"ds_write_b128 v4, v[{T+12}:{T+15}] offset:{3*CPY+off}", tag="c")
        if rr == 4:
            a("s_mov_b64 exec, s[62:63]")
    a.wait_vm("u", "D")
    a.wait_all_lgkm()
    if stamp:
        stamp_mid(a, 0)
    def rd_A(slot, m):
        r = AFR + 4*slot
        a.lds(f"ds_read_b64 v[{r}:{r+1}], v12 offset:{64*m}", tag=("A", m))
        a.lds(f"ds_read_b64 v[{r+2}:{r+3}], v12 offset:{64*m+8}", tag=("A", m))
    def rd_B(idx, n):
        r = BFR + 4*(idx % NB)
        a.lds(f"ds_read_b128 v[{r}:{r+3}], v13 offset:{64*(63-n)}", tag=("B", idx))
    bidx = 0
    for ph in range(2):
        m0 = 32*ph
        ns = list(range(64)) if ph == 0 else list(range(32))
        work = []
        for n in ns:
            ms = [m for m in range(m0, m0+32) if (m + n) % 8 == 7 and m + n <= 63]
            if ms:
                work.append((n, ms))
        a_loaded = set()
        PB = 4
        for w in range(min(PB, len(work))):
            rd_B(bidx + w, work[w][0])
            for m in work[w][1]:
                if m not in a_loaded:
                    rd_A(m - m0, m); a_loaded.add(m)
        for w, (n, ms) in enumerate(work):
            for mi, m in enumerate(ms):
                c = (m + n - 7)//8
                a.wait_lgkm(("B", bidx + w), ("A", m))
                br = BFR + 4*((bidx + w) % NB)
                ar = AFR + 4*(m - m0)
                a(f"v_mfma_f32_16x16x32_bf16 v[{ACC+4*c}:{ACC+4*c+3}], v[{ar}:{ar+3}], v[{br}:{br+3}], v[{ACC+4*c}:{ACC+4*c+3}]")
                if mi == 0 and w + PB < len(work):
                    rd_B(bidx + w + PB, work[w + PB][0])
                    for m2 in work[w + PB][1]:
                        if m2 not in a_loaded:
                            rd_A(m2 - m0, m2); a_loaded.add(m2)
        bidx += len(work)
    if stamp:
        stamp_mid(a, 1)
    a("v_lshlrev_b32 v6, 16, v6")
    a("v_and_b32 v4, 15, v2")
    a("v_lshlrev_b32 v4, 5, v4")
    a("v_lshl_add_u32 v4, v7, 3, v4")
    a(f"v_sub_u32 v5, {UOFF + 4088 - 512*7}, v4")
    a("v_add_u32 v5, s59, v5")
    a("v_add_u32 v14, s59, v4")
    for c in range(8):
        a.lds(f"ds_read_b64 v[{32+2*c}:{33+2*c}], v5 offset:{512*(7-c)}", tag=("k", c))
    a("s_nop 7")
    a("s_nop 7")
    for c in range(8):
        a.wait_lgkm(("k", c))
        K = 32 + 2*c; A = ACC + 4*c; T = 64 + (c % 2) * 16
        a(f"v_and_b32 v{T}, 0xffff0000, v{K+1}")
        a(f"v_lshlrev_b32 v{T+1}, 16, v{K+1}")
        a(f"v_and_b32 v{T+2}, 0xffff0000, v{K}")
        a(f"v_lshlrev_b32 v{T+3}, 16, v{K}")
        for r in range(4):
            a(f"v_mul_f32 v{T+r}, v{T+r}, v6")
        a(f"v_cvt_pk_bf16_f32 v{T+4}, v{T}, v{T+1}")
        a(f"v_cvt_pk_bf16_f32 v{T+5}, v{T+2}, v{T+3}")
        a(f"v_cvt_pk_bf16_f32 v{T+6}, v{A}, v{A+1}")
        a(f"v_cvt_pk_bf16_f32 v{T+7}, v{A+2}, v{A+3}")
        for p in range(2):
            a(f"v_lshlrev_b32 v{T}, 16, v{T+4+p}")
            a(f"v_and_b32 v{T+1}, 0xffff0000, v{T+4+p}")
            a(f"v_lshlrev_b32 v{T+2}, 16, v{T+6+p}")
            a(f"v_and_b32 v{T+3}, 0xffff0000, v{T+6+p}")
            a(f"v_add_f32 v{T}, v{T}, v{T+2}")
            a(f"v_add_f32 v{T+1}, v{T+1}, v{T+3}")
            a(f"v_cvt_pk_bf16_f32 v{T+8+p}, v{T}, v{T+1}")
        a.lds(f"ds_write_b64 v14, v[{T+8}:{T+9}] offset:{512*c}", tag="y")
    a.wait_all_lgkm()
    lds_sync(4, 4, f"{name}_ts")
    a("v_subrev_u32 v15, 256, v0")
    a("v_lshlrev_b32 v4, 2, v15")
    a(f"v_add_u32 v4, {G2B}, v4")
    a(f"v_add_u32 v7, {2*WVB}, v4")
    for i in range(4):
        for ch in range(4):
            a.lds(f"ds_read_b32 v{32+4*i+ch}, v{4 if ch < 2 else 7} offset:{(ch%2)*WVB + i*1024}", tag=("t", i))
    a("s_mov_b32 s40, 0x05040100")
    a("s_mov_b32 s41, 0x07060302")
    a("s_lshl_b32 s42, s2, 14")
    a("v_lshlrev_b32 v5, 4, v15")
    a("v_add_u32 v5, s42, v5")
    for i in range(4):
        a.wait_lgkm(("t", i))
        r = 32 + 4*i; T = 64 + 4*i
        a(f"v_perm_b32 v{T}, v{r+1}, v{r}, s40")
        a(f"v_perm_b32 v{T+1}, v{r+3}, v{r+2}, s40")
        a(f"v_perm_b32 v{T+2}, v{r+1}, v{r}, s41")
        a(f"v_perm_b32 v{T+3}, v{r+3}, v{r+2}, s41")
        a(f"v_add_u32 v6, {i*4096}, v5")
        a(f"buffer_store_dwordx4 v[{T}:{T+3}], v6, s[16:19], 0 offen sc1")
    a("s_waitcnt vmcnt(0)")
    srd(a, 40, 4, 4096, add=WS_FLAGS)
    a("s_lshl_b32 s56, s2, 2")
    a("s_add_u32 s56, s56, s33")
    a("s_lshl_b32 s56, s56, 2")
    a("v_mov_b32 v4, s56")
    a("v_mov_b32 v5, 1")
    a("s_mov_b64 exec, 1")
    a("buffer_store_dword v5, v4, s[40:43], 0 offen sc1")
    a("s_mov_b64 exec, -1")
    a(f"s_lshl_b32 s38, s{S_RT}, 7")
    a("s_lshl_b32 s39, s33, 5")
    a("s_add_u32 s38, s38, s39")
    a(f"s_lshl_b32 s36, s{S_CT}, 7")
    a("v_lshrrev_b32 v4, 3, v2")
    a("v_add_u32 v4, s38, v4")
    a("v_lshlrev_b32 v4, 11, v4")
    a("v_and_b32 v5, 7, v2")
    a("v_lshl_add_u32 v4, v5, 4, v4")
    a("v_add_u32 v4, s36, v4")
    srd(a, 24, 50, S*D*2)
    srd(a, 28, 4, S*8, add=WS_STATS)
    for i in range(4):
        a(f"s_add_u32 m0, s59, {XO + i*1024}")
        a(f"s_mov_b32 s60, {i*8*2048}")
        a(f"buffer_load_dwordx4 v4, s[24:27], s60 offen lds")
    a("s_lshl_b32 s56, s38, 3")
    a("v_add_u32 v7, s56, v3")
    a(f"s_add_u32 m0, s59, {SO}")
    a("s_nop 0")
    a("buffer_load_dwordx4 v7, s[28:31], 0 offen lds")
    a("s_lshl_b32 s56, s36, 1")
    a("v_lshlrev_b32 v19, 2, v2")
    a("v_add_u32 v19, s56, v19")
    a("s_cmp_eq_u32 s33, 0")
    a(f"s_cbranch_scc0 {name}_wait_lds")
    a("s_mov_b32 s58, 100000")
    a.label(f"{name}_poll")
    a("buffer_load_dword v20, v19, s[40:43], 0 offen sc1")
    a("s_waitcnt vmcnt(0)")
    a("v_cmp_ne_u32 vcc, 0, v20")
    a("s_nop 3")
    a("s_cmp_eq_u64 vcc, -1")
    a(f"s_cbranch_scc1 {name}_polled1")
    a(f"s_sleep {poll_sleep}")
    a("s_sub_u32 s58, s58, 1")
    a("s_cmp_lg_u32 s58, 0")
    a(f"s_cbranch_scc1 {name}_poll")
    a.label(f"{name}_polled1")
    lds_sync(12, 0, None)
    a(f"s_branch {name}_polled2")
    a.label(f"{name}_wait_lds")
    a(f"v_mov_b32 v23, {CNT}")
    a.label(f"{name}_wl")
    a("ds_read_b32 v25, v23 offset:12")
    a("s_waitcnt lgkmcnt(0)")
    a("v_readfirstlane_b32 s62, v25")
    a("s_nop 3")
    a("s_cmp_ge_u32 s62, 1")
    a(f"s_cbranch_scc1 {name}_polled2")
    a("s_sleep 8")
    a(f"s_branch {name}_wl")
    a.label(f"{name}_polled2")
    a("v_lshrrev_b32 v4, 4, v2")
    a("v_lshlrev_b32 v4, 14, v4")
    a("v_and_b32 v5, 15, v2")
    a("v_lshl_add_u32 v4, v5, 4, v4")
    a("s_lshl_b32 s56, s36, 11")
    a("s_lshl_b32 s57, s38, 3")
    a("s_add_u32 s56, s56, s57")
    a("v_add_u32 v21, s56, v4")
    a("v_add_u32 v22, s59, v3")
    for i in range(4):
        a(f"s_mov_b32 s60, {i*4*16384}")
        a(f"buffer_load_dwordx4 v[{64+4*i}:{67+4*i}], v21, s[16:19], s60 offen sc1")
    a("s_waitcnt vmcnt(0)")
    for i in range(4):
        a(f"ds_write_b128 v22, v[{64+4*i}:{67+4*i}] offset:{YO + i*1024}")
    a("s_waitcnt lgkmcnt(0)")
    lds_sync(8, 0, None)
    if stamp:
        a("s_waitcnt lgkmcnt(0)")
        stamp_end(a, S_WV, 2)
    a.label(f"{name}_end")
    a("s_endpgm")
    return a.text() + kernel_desc(name, 224, 96)
```

```python
from asmgen import *
from gen_common import *

STG = 32768
XB = 16384
WB = 8192
NS = 4
RING = STG * NS
CSOFF = RING
STALL = RING + 1024
LDS_BYTES = RING + 1024 + 2048
NH = 32

def gen_k1a(name="k1_kernel", PD=3, stamp=False, it_poll=4, it_post=2, poll_max=200000, nt0=5, kvtouch=True):
    a = Asm()
    a.raw(kernel_header(name))
    AF = 32; GA = 64; ONES = 192; BFA = 128; CSA = 192
    VA0, VA1, VB = 8, 9, 10
    VD = 12
    S_XSRD = 8; S_WSRD = 12; S_HSRD = 28
    S_WV = 32; S_XO = 33; S_WO = 34; S_CNT = 35
    S_SLOT = list(range(36, 44))
    S_RT = 44; S_CT = 45; S_RD = 47; S_DM = 48; S_DELTA = 49; S_OK = 50
    a("s_cmp_ge_u32 s2, 256")
    a(f"s_cbranch_scc1 {name}_end")
    if stamp:
        stamp_begin(a)
    a(f"s_load_dwordx2 s[4:5], s[0:1], {KA_WS}")
    a(f"s_load_dwordx4 s[52:55], s[0:1], {KA_W1}")
    a(f"s_load_dwordx4 s[92:95], s[0:1], {KA_Q}")
    a(f"s_load_dwordx2 s[90:91], s[0:1], {KA_DBG}")
    a("v_lshrrev_b32 v1, 6, v0")
    a("v_and_b32 v2, 63, v0")
    a("v_lshlrev_b32 v26, 4, v2")
    a(f"v_readfirstlane_b32 s{S_WV}, v1")
    a(f"s_cmp_lt_u32 s2, {NH}")
    a(f"s_cbranch_scc1 {name}_helper")
    a(f"s_sub_u32 s58, s2, {NH}")
    a("s_and_b32 s56, s58, 7")
    a("s_lshr_b32 s57, s58, 3")
    a("s_and_b32 s58, s56, 1")
    a("s_lshl_b32 s58, s58, 2")
    a("s_and_b32 s59, s57, 3")
    a(f"s_add_u32 s{S_RT}, s58, s59")
    a("s_lshr_b32 s58, s56, 1")
    a("s_mul_i32 s58, s58, 7")
    a("s_lshr_b32 s59, s57, 2")
    a(f"s_add_u32 s{S_CT}, s58, s59")
    a("v_lshrrev_b32 v3, 4, v2")
    a("v_sub_u32 v3, 0, v3")
    a("v_xor_b32 v3, v3, v2")
    a("v_and_b32 v3, 3, v3")
    a("v_lshrrev_b32 v4, 2, v2")
    a(f"s_lshl_b32 s56, s{S_RT}, 8")
    a(f"s_lshl_b32 s57, s{S_WV}, 6")
    a("s_add_u32 s56, s56, s57")
    a("v_add_u32 v4, s56, v4")
    a("v_lshlrev_b32 v4, 11, v4")
    a(f"v_lshl_add_u32 v{VD}, v3, 4, v4")
    for sl in range(4):
        if sl:
            a(f"v_add_u32 v{VD+sl}, {sl*32768}, v{VD}")
        a(f"s_lshl_b32 s{S_SLOT[sl]}, s{S_WV}, 12")
        a(f"s_add_u32 s{S_SLOT[sl]}, s{S_SLOT[sl]}, {sl*1024}")
    a("v_lshrrev_b32 v3, 4, v2")
    a("v_bfe_u32 v4, v2, 2, 2")
    a("v_and_b32 v5, 3, v2")
    a(f"s_and_b32 s56, s{S_WV}, 1")
    a("s_lshl_b32 s56, s56, 4")
    a("v_add_u32 v4, s56, v4")
    a("v_mul_u32_u24 v4, 0x1c00, v4")
    a(f"s_lshl_b32 s56, s{S_CT}, 8")
    a("v_lshl_add_u32 v4, v3, 6, v4")
    a("v_add_u32 v4, s56, v4")
    for sl in range(4):
        x = 2*((sl >> 1) & 1)
        a(f"v_xor_b32 v6, {x}, v5")
        a("v_lshlrev_b32 v6, 4, v6")
        a(f"v_add_u32 v6, {sl*4*7168}, v6")
        a(f"v_add_u32 v{VD+4+sl}, v4, v6")
        a(f"s_lshl_b32 s{S_SLOT[4+sl]}, s{S_WV}, 12")
        a(f"s_add_u32 s{S_SLOT[4+sl]}, s{S_SLOT[4+sl]}, {XB + sl*1024}")
    a("s_waitcnt lgkmcnt(0)")
    srd(a, S_XSRD, 92, S*D*2)
    a(f"s_cmp_lt_u32 s{S_WV}, 2")
    a(f"s_cselect_b32 s{S_WSRD}, s52, s54")
    a(f"s_cselect_b32 s{S_WSRD+1}, s53, s55")
    a(f"s_mov_b32 s{S_WSRD+2}, {D*F*2}")
    a(f"s_mov_b32 s{S_WSRD+3}, 0x00020000")
    def dma_ld(sl, tag):
        if sl < 4:
            a.vmem(f"buffer_load_dwordx4 v{VD+sl}, s[{S_XSRD}:{S_XSRD+3}], s{S_XO} offen lds", tag=tag)
        else:
            a.vmem(f"buffer_load_dwordx4 v{VD+sl}, s[{S_WSRD}:{S_WSRD+3}], s{S_WO} offen lds", tag=tag)
    a.vm = []
    for st in range(NS - 1):
        a(f"s_mov_b32 s{S_XO}, {st*64}")
        a(f"s_mov_b32 s{S_WO}, {st*32*7168}")
        for sl in range(8):
            a(f"s_add_u32 m0, s{S_SLOT[sl]}, {st*STG}")
            a("s_nop 0")
            dma_ld(sl, ("d", st))
    a(f"s_mov_b32 s{S_XO}, {(NS-1)*64}")
    a(f"s_mov_b32 s{S_WO}, {(NS-1)*32*7168}")
    a(f"s_mov_b32 s{S_DM}, {(NS-1)*STG}")
    a("v_lshrrev_b32 v3, 4, v2")
    a("v_bfe_u32 v4, v2, 2, 2")
    a("v_and_b32 v5, 3, v2")
    a("v_lshlrev_b32 v6, 6, v4")
    a("v_lshl_add_u32 v6, v5, 3, v6")
    a("v_lshl_add_u32 v6, v3, 11, v6")
    a(f"s_and_b32 s56, s{S_WV}, 1")
    a("s_lshl_b32 s56, s56, 9")
    a("v_add_u32 v6, s56, v6")
    a("v_and_b32 v7, 1, v3")
    a(f"v_lshl_add_u32 v{VA0}, v7, 5, v6")
    a("v_xor_b32 v7, 1, v7")
    a(f"v_lshl_add_u32 v{VA1}, v7, 5, v6")
    a("v_lshrrev_b32 v6, 2, v2")
    a("v_sub_u32 v6, 0, v6")
    a("v_xor_b32 v6, v6, v3")
    a("v_and_b32 v6, 3, v6")
    a("v_and_b32 v7, 15, v2")
    a(f"s_lshr_b32 s56, s{S_WV}, 1")
    a("s_lshl_b32 s56, s56, 7")
    a("v_add_u32 v7, s56, v7")
    a("v_lshlrev_b32 v7, 6, v7")
    a(f"v_lshl_add_u32 v{VB}, v6, 4, v7")
    for i in range(4):
        a(f"v_mov_b32 v{ONES+i}, 0x3f803f80")
    srd(a, 16, 52, D*F*2)
    srd(a, 20, 54, D*F*2)
    a(f"s_sub_u32 s60, s2, {NH}")
    a("s_lshl_b32 s60, s60, 2")
    a(f"s_add_u32 s60, s60, s{S_WV}")
    a("s_lshl_b32 s60, s60, 9")
    a("v_lshlrev_b32 v23, 7, v2")
    a("v_add_u32 v23, s60, v23")
    a("v_mov_b32 v24, 0x80000000")
    a("v_cmp_gt_u32 vcc, 4, v2")
    a(f"s_mov_b32 s24, {96*7168}")
    a("v_cndmask_b32 v23, v24, v23, vcc")
    for i in range(nt0):
        a(f"buffer_load_dword v25, v23, s[16:19], s24 offen")
        a(f"buffer_load_dword v25, v23, s[20:23], s24 offen")
        a(f"s_add_u32 s24, s24, {64*7168}")
    a(f"s_mov_b32 s{S_RD}, 0")
    a(f"s_mov_b32 s{S_OK}, 0")
    a("v_mov_b32 v31, 0")
    a("s_mov_b32 s56, s90"); a("s_mov_b32 s57, s91"); a("s_mov_b32 s58, 256"); a("s_mov_b32 s59, 0x00020000")
    a(f"s_lshl_b32 s60, s{S_RT}, 2")
    a("v_mov_b32 v27, s60")
    a.vm += [("u", 0)]*(2*nt0)
    pro_vm = list(a.vm)
    a(f"s_cmp_ge_u32 s{S_WV}, 2")
    a(f"s_cbranch_scc1 {name}_p1")

    order = []
    for j in range(4):
        order.append((0, j)); order.append((1, j))
    def rd_a1(ai, hf, tag):
        m, j = order[ai]
        base = VA0 if (j & 1) == 0 else VA1
        imm = XB + m*WB + hf*1024 + (j >> 1)*256
        a.lds(f"ds_read_b64_tr_b16 v[{AF+4*ai+2*hf}:{AF+4*ai+2*hf+1}], v{base} offset:{imm}", tag=tag)
    def rd_b(bs, bt, tag):
        r = BFA + 32*bs + 4*bt
        a.lds(f"ds_read_b128 a[{r}:{r+3}], v{VB} offset:{bt*1024}", tag=tag)
    def acc(m, j, bt):
        i = (j*8 + bt)*4
        return f"v[{GA+i}:{GA+i+3}]" if m == 0 else f"a[{i}:{i+3}]"
    def once(lbl, it, fn):
        a(f"s_cmp_lg_u32 s{S_CNT}, {it}")
        a(f"s_cbranch_scc1 {lbl}")
        fn()
        a.label(lbl)
    def post_loads():
        srd(a, 92, 4, S*8, add=WS_STATS)
        a(f"s_lshl_b32 s60, s{S_RT}, 11")
        a("v_lshlrev_b32 v3, 5, v2")
        a("v_add_u32 v3, s60, v3")
        a("buffer_load_dwordx4 v[240:243], v3, s[92:95], 0 offen sc1")
        a("buffer_load_dwordx4 v[244:247], v3, s[92:95], 0 offen offset:16 sc1")

    def path(ws):
        lbl = f"{name}_p{ws}"
        a.label(lbl)
        a.lgkm = []; a.vm = list(pro_vm)
        a.wait_vm(("d", 0))
        a("s_barrier")
        for ai in range(PD):
            rd_a1(ai, 0, ("a", 0, ai)); rd_a1(ai, 1, ("a", 0, ai))
        b_pos = []
        a.lgkm = []
        bi = 0
        for g in (5, 6, 7):
            a.lgkm += [("a", 0, g - 5), ("a", 0, g - 5)]
            for _ in range(3 if g < 7 else 2):
                rd_b(0, bi, ("b", 0, bi)); a.lgkm.pop(); a.lgkm.append(("b", 0, bi)); bi += 1
        a("s_waitcnt lgkmcnt(0)")
        model_l = list(a.lgkm)
        if stamp:
            stamp_mid(a, 0)
        def stage(ph, peel):
            a.wait_vm(("d", ph + 1))
            a("s_barrier")
            if ph == 0 and not peel and ws == 1:
                def poll():
                    a(f"s_cmp_lg_u32 s{S_WV}, 3")
                    a(f"s_cbranch_scc1 {lbl}_o6")
                    a("buffer_load_dword v31, v27, s[56:59], 0 offen sc1")
                once(f"{lbl}_o6", it_poll, poll)
                def post():
                    a(f"s_cmp_lg_u32 s{S_WV}, 3")
                    a(f"s_cbranch_scc1 {lbl}_o8")
                    a("v_readfirstlane_b32 s60, v31")
                    a("s_nop 3")
                    a("s_cmp_lg_u32 s60, 0xffff")
                    a(f"s_cbranch_scc1 {lbl}_o8")
                    post_loads()
                    a(f"s_mov_b32 s{S_OK}, 1")
                once(f"{lbl}_o8", it_post, post)
            gaps = [[] for _ in range(64)]
            for g in range(8):
                ga = g + PD
                tgt = (ga, ph) if ga < 8 else (ga - 8, 1 - ph)
                gaps[8*g + 0].append(lambda t=tgt: rd_a1(t[0], 0, ("a", t[1], t[0])))
                gaps[8*g + 1].append(lambda t=tgt: rd_a1(t[0], 1, ("a", t[1], t[0])))
            bi = 0
            for g in (5, 6, 7):
                for k in range(3 if g < 7 else 2):
                    gaps[8*g + 2 + k].append(lambda bi=bi: rd_b(1 - ph, bi, ("b", 1 - ph, bi)))
                    bi += 1
            for i in range(8):
                gaps[8*i + 5].append(lambda i=i: a(f"s_add_u32 m0, s{S_DM}, s{S_SLOT[i]}"))
                gaps[8*i + 6].append(lambda i=i: dma_ld(i, ("d", ph + 3)))
            def adv():
                a(f"s_add_u32 s{S_XO}, s{S_XO}, 64")
                a(f"s_add_u32 s{S_WO}, s{S_WO}, {32*7168}")
                a(f"s_add_u32 s{S_DM}, s{S_DM}, {STG}")
                a(f"s_and_b32 s{S_DM}, s{S_DM}, {STG*NS-1}")
            gaps[63].append(adv)
            sr = 16 if ph == 0 else 20
            gaps[62].append(lambda sr=sr: a.vmem(f"buffer_load_dword v25, v23, s[{sr}:{sr+3}], s24 offen", tag=("t", 0)))
            if ph == 1:
                gaps[63].append(lambda: a(f"s_add_u32 s24, s24, {64*7168}"))
            def rd_adv1():
                a(f"s_add_u32 s{S_DELTA}, s{S_RD}, {STG}")
                a(f"s_and_b32 s62, s{S_DELTA}, {STG*NS-1}")
                a(f"s_sub_u32 s{S_DELTA}, s62, s{S_RD}")
                a(f"s_mov_b32 s{S_RD}, s62")
            gaps[8*3 + 3].append(rd_adv1)
            gaps[8*4 + 2].append(lambda: a(f"v_add_u32 v{VA0}, s{S_DELTA}, v{VA0}"))
            gaps[8*4 + 3].append(lambda: a(f"v_add_u32 v{VA1}, s{S_DELTA}, v{VA1}"))
            gaps[8*4 + 4].append(lambda: a(f"v_add_u32 v{VB}, s{S_DELTA}, v{VB}"))
            first = peel and ph == 0
            for g in range(8):
                m, j = order[g]
                tags = [("a", ph, g)]
                if g == 0:
                    tags += [("b", ph, bt) for bt in range(8)]
                a.wait_lgkm(*tags)
                for bt in range(8):
                    r = BFA + 32*ph + 4*bt
                    a(f"v_mfma_f32_16x16x32_bf16 {acc(m,j,bt)}, v[{AF+4*g}:{AF+4*g+3}], a[{r}:{r+3}], {'0' if first else acc(m,j,bt)}")
                    if bt == 7 and (g >> 2) == ws:
                        c = CSA + 4*(g & 3)
                        a(f"v_mfma_f32_16x16x32_bf16 a[{c}:{c+3}], v[{AF+4*g}:{AF+4*g+3}], v[{ONES}:{ONES+3}], {'0' if first else 'a[%d:%d]' % (c, c+3)}")
                    for f in gaps[8*g + bt]:
                        f()
        a.lgkm = list(model_l)
        stage(0, True); stage(1, True)
        a.vm = [(t, k - 2 if t == "d" else k) for (t, k) in a.vm]
        a(f"s_mov_b32 s{S_CNT}, 15")
        a.label(f"{lbl}_loop")
        entry_l = list(a.lgkm); entry_v = list(a.vm)
        stage(0, False); stage(1, False)
        assert a.lgkm == entry_l, (a.lgkm, entry_l)
        def strip(q):
            q = list(q)
            while q and q[0][0] != "d":
                q.pop(0)
            return q
        assert strip([(t, k - 2 if t == "d" else k) for (t, k) in a.vm]) == strip(entry_v), (a.vm, entry_v)
        a(f"s_sub_u32 s{S_CNT}, s{S_CNT}, 1")
        a(f"s_cmp_lg_u32 s{S_CNT}, 0")
        a(f"s_cbranch_scc1 {lbl}_loop")
        a.lgkm = []; a.vm = []
        if stamp:
            stamp_mid(a, 1)
        a("v_lshrrev_b32 v3, 4, v2")
        a("v_lshlrev_b32 v3, 4, v3")
        a(f"s_and_b32 s60, s{S_WV}, 1")
        a("s_lshl_b32 s60, s60, 9")
        a(f"s_add_u32 s60, s60, {CSOFF}")
        a("v_add_u32 v3, s60, v3")
        a("s_nop 7")
        a("s_mov_b32 s60, 0x00010001")
        a("s_mov_b32 s61, 0x00010001")
        a("s_mov_b64 exec, s[60:61]")
        for k in range(4):
            g = 4*ws + k
            a(f"ds_write_b128 v3, a[{CSA+4*k}:{CSA+4*k+3}] offset:{g*64}")
        a("s_mov_b64 exec, -1")
        if ws == 1:
            a(f"s_cmp_lg_u32 s{S_WV}, 3")
            a(f"s_cbranch_scc1 {name}_epi")
            a(f"s_cmp_eq_u32 s{S_OK}, 1")
            a(f"s_cbranch_scc1 {lbl}_fb")
            a(f"s_mov_b32 s62, {poll_max}")
            a.label(f"{lbl}_poll")
            a("buffer_load_dword v31, v27, s[56:59], 0 offen sc1")
            a("s_waitcnt vmcnt(0)")
            a("v_readfirstlane_b32 s60, v31")
            a("s_nop 3")
            a("s_cmp_eq_u32 s60, 0xffff")
            a(f"s_cbranch_scc1 {lbl}_pd")
            a("s_sleep 8")
            a("s_sub_u32 s62, s62, 1")
            a("s_cmp_lg_u32 s62, 0")
            a(f"s_cbranch_scc1 {lbl}_poll")
            a.label(f"{lbl}_pd")
            post_loads()
            a.label(f"{lbl}_fb")
            a("s_waitcnt vmcnt(0)")
            a(f"v_lshlrev_b32 v3, 5, v2")
            a(f"v_add_u32 v3, {STALL}, v3")
            a("ds_write_b128 v3, v[240:243]")
            a("ds_write_b128 v3, v[244:247] offset:16")
        else:
            a(f"s_branch {name}_epi")
    path(0)
    path(1)
    a.label(f"{name}_epi")
    a("s_waitcnt lgkmcnt(0)")
    a("s_barrier")
    if stamp: a("s_memtime s[92:93]")
    srd(a, S_HSRD, 4, S*F*2, add=WS_H)
    a("v_lshrrev_b32 v7, 4, v2")
    a("v_lshlrev_b32 v3, 4, v7")
    a(f"s_and_b32 s60, s{S_WV}, 1")
    a("s_lshl_b32 s60, s60, 9")
    a(f"s_add_u32 s60, s60, {CSOFF}")
    a("v_add_u32 v3, s60, v3")
    CS = 32
    for g in range(8):
        a(f"ds_read_b128 v[{CS+4*g}:{CS+4*g+3}], v3 offset:{g*64}")
    a("v_and_b32 v5, 15, v2")
    a(f"s_lshr_b32 s60, s{S_WV}, 1")
    a("s_lshl_b32 s60, s60, 10")
    a(f"s_add_u32 s60, s60, {STALL}")
    a("v_lshl_add_u32 v5, v5, 3, s60")
    ST = 208
    for bt in range(8):
        a(f"ds_read_b64 v[{ST+2*bt}:{ST+2*bt+1}], v5 offset:{bt*128}")
    a(f"s_lshl_b32 s54, s{S_RT}, 4")
    a(f"s_lshr_b32 s55, s{S_WV}, 1")
    a("s_lshl_b32 s55, s55, 3")
    a("s_add_u32 s54, s54, s55")
    a("s_mul_i32 s54, s54, 112")
    a(f"s_lshl_b32 s55, s{S_CT}, 2")
    a("s_add_u32 s54, s54, s55")
    a(f"s_and_b32 s55, s{S_WV}, 1")
    a("s_lshl_b32 s55, s55, 1")
    a("s_add_u32 s54, s54, s55")
    a("s_lshl_b32 s54, s54, 10")
    a("v_add_u32 v3, s54, v26")
    a("s_mov_b32 s56, 0xbfb8aa3b")
    a("s_waitcnt lgkmcnt(0)")
    def hcalc(j, bt, T, O):
        G = GA + (j*8 + bt)*4
        U = (j*8 + bt)*4
        C1 = CS + 4*(2*j); C3 = CS + 4*(2*j + 1)
        NM, C1S, I2 = 8, 10, 12
        for r in range(4):
            a(f"v_accvgpr_read_b32 v{T+4+r}, a{U+r}")
        for r in (0, 2):
            a(f"v_pk_fma_f32 v[{G+r}:{G+r+1}], v[{C1+r}:{C1+r+1}], v[{NM}:{NM+1}], v[{G+r}:{G+r+1}] op_sel_hi:[1,0,1]")
        for r in (0, 2):
            a(f"v_pk_mul_f32 v[{T+r}:{T+r+1}], v[{G+r}:{G+r+1}], v[{C1S}:{C1S+1}] op_sel_hi:[1,0]")
        for r in range(4):
            a(f"v_exp_f32 v{T+r}, v{T+r}")
        for r in (0, 2):
            a(f"v_pk_fma_f32 v[{T+4+r}:{T+5+r}], v[{C3+r}:{C3+r+1}], v[{NM}:{NM+1}], v[{T+4+r}:{T+5+r}] op_sel_hi:[1,0,1]")
        for r in (0, 2):
            a(f"v_pk_fma_f32 v[{T+r}:{T+r+1}], v[{T+r}:{T+r+1}], v[{I2}:{I2+1}], v[{I2}:{I2+1}] op_sel_hi:[1,0,0]")
        for r in (0, 2):
            a(f"v_pk_mul_f32 v[{T+4+r}:{T+5+r}], v[{T+4+r}:{T+5+r}], v[{G+r}:{G+r+1}]")
        for r in range(4):
            a(f"v_rcp_f32 v{T+r}, v{T+r}")
        a("s_nop 0")
        for r in (0, 2):
            a(f"v_pk_mul_f32 v[{T+4+r}:{T+5+r}], v[{T+4+r}:{T+5+r}], v[{T+r}:{T+r+1}]")
        a(f"v_cvt_pk_bf16_f32 v{O}, v{T+4}, v{T+5}")
        a(f"v_cvt_pk_bf16_f32 v{O+1}, v{T+6}, v{T+7}")
    k = 0
    for bt in range(8):
        a(f"v_sub_f32 v8, 0, v{ST+2*bt}")
        a(f"v_rcp_f32 v10, v{ST+2*bt+1}")
        a(f"v_mul_f32 v12, v{ST+2*bt+1}, v{ST+2*bt+1}")
        a("v_mul_f32 v10, s56, v10")
        for p in range(2):
            O = 240 + (k % 2) * 4
            hcalc(2*p, bt, 224, O)
            hcalc(2*p+1, bt, 232, O + 2)
            a(f"buffer_store_dwordx4 v[{O}:{O+3}], v3, s[{S_HSRD}:{S_HSRD+3}], 0 offen offset:{p*1024}")
            k += 1
        if bt < 7:
            a(f"v_add_u32 v3, {112*1024}, v3")
    if stamp:
        a("s_memtime s[94:95]")
        a("s_waitcnt lgkmcnt(0)")
        a("s_sub_u32 s96, s94, s92")
        a("s_mov_b32 s94, 0")
        a("s_sub_u32 s92, s92, s70")
        stamp_end(a, S_WV, 1)
        a("v_mov_b32 v12, s92"); a("v_mov_b32 v13, s94")
        a("buffer_store_dwordx2 v[12:13], v5, s[76:79], 0 offen offset:24")
        a("v_mov_b32 v14, s96")
        a("buffer_store_dword v14, v5, s[76:79], 0 offen offset:20")
    a("s_endpgm")

    a.label(f"{name}_helper")
    a.lgkm = []; a.vm = []
    a(f"s_load_dwordx4 s[80:83], s[0:1], {KA_V}")
    a(f"s_load_dwordx2 s[84:85], s[0:1], {KA_SSMK}")
    a(f"s_load_dwordx2 s[86:87], s[0:1], {KA_W2}")
    a("s_lshl_b32 s33, s2, 2")
    a(f"s_add_u32 s33, s33, s{S_WV}")
    a("s_lshl_b32 s34, s33, 13")
    a("v_lshlrev_b32 v3, 7, v2")
    a("v_add_u32 v3, s34, v3")
    a("s_waitcnt lgkmcnt(0)")
    srd(a, 8, 92, S*D*2)
    srd(a, 12, 52, D*F*2)
    srd(a, 16, 54, D*F*2)
    a("s_lshl_b32 s35, s33, 4")
    a("v_and_b32 v4, 15, v2")
    a("v_add_u32 v4, s35, v4")
    a("v_lshlrev_b32 v4, 11, v4")
    a("v_lshrrev_b32 v5, 4, v2")
    a("v_lshl_add_u32 v4, v5, 4, v4")
    def touch(sr, n):
        for t in range(n):
            a(f"s_mov_b32 s36, {t*8192*128}")
            a(f"buffer_load_dword v62, v3, s[{sr}:{sr+3}], s36 offen")
    for t in range(32):
        a(f"buffer_load_dwordx4 v[{64+4*t}:{67+4*t}], v4, s[8:11], 0 offen offset:{t*64}")
    srd(a, 20, 94, S*D*2)
    srd(a, 24, 80, S*D*2)
    for i in range(4):
        a(f"v_mov_b32 v{40+i}, 0x3f803f80")
    for t in range(32):
        if t % 4 == 0:
            a(f"s_waitcnt vmcnt({31 - (t + 3)})")
        c0 = "0" if t == 0 else "v[32:35]"
        c1 = "0" if t == 0 else "v[36:39]"
        a(f"v_mfma_f32_16x16x32_bf16 v[32:35], v[{64+4*t}:{67+4*t}], v[{64+4*t}:{67+4*t}], {c0}")
        a(f"v_mfma_f32_16x16x32_bf16 v[36:39], v[{64+4*t}:{67+4*t}], v[40:43], {c1}")
    a("s_nop 7"); a("s_nop 7")
    a("v_and_b32 v5, 3, v2")
    a("v_cmp_eq_u32 vcc, 1, v5")
    a("v_cmp_eq_u32 s[36:37], 2, v5")
    a("v_cmp_eq_u32 s[38:39], 3, v5")
    a("v_mov_b32 v48, v36"); a("v_mov_b32 v49, v32")
    a("v_cndmask_b32 v48, v48, v37, vcc"); a("v_cndmask_b32 v49, v49, v33, vcc")
    a("v_cndmask_b32 v48, v48, v38, s[36:37]"); a("v_cndmask_b32 v49, v49, v34, s[36:37]")
    a("v_cndmask_b32 v48, v48, v39, s[38:39]"); a("v_cndmask_b32 v49, v49, v35, s[38:39]")
    a("v_mul_f32 v48, 0x3a800000, v48")
    a("v_mul_f32 v49, 0x3a800000, v49")
    a("v_fma_f32 v51, -v48, v48, v49")
    a("v_max_f32 v51, 0, v51")
    a("v_cvt_pk_bf16_f32 v52, v48, v51")
    a("v_lshlrev_b32 v20, 16, v52")
    a("v_and_b32 v51, 0xffff0000, v52")
    a("v_add_f32 v51, 0x3727c5ac, v51")
    a("v_cvt_pk_bf16_f32 v52, v51, v51")
    a("v_lshlrev_b32 v51, 16, v52")
    a("v_sqrt_f32 v51, v51")
    a("s_nop 0")
    a("v_cvt_pk_bf16_f32 v52, v51, v51")
    a("v_lshlrev_b32 v21, 16, v52")
    srd(a, 28, 4, S*8, add=WS_STATS)
    a("s_lshl_b32 s36, s35, 3")
    a("v_and_b32 v6, 15, v2")
    a("v_lshlrev_b32 v6, 3, v6")
    a("v_add_u32 v6, s36, v6")
    a("s_mov_b32 s36, 0x00f0000f")
    a("s_mov_b32 s37, 0xf0000f00")
    a("s_mov_b64 exec, s[36:37]")
    a("buffer_store_dwordx2 v[20:21], v6, s[28:31], 0 offen sc1")
    a("s_mov_b64 exec, -1")
    a("s_waitcnt vmcnt(0)")
    a("s_mov_b32 s56, s90"); a("s_mov_b32 s57, s91"); a("s_mov_b32 s58, 256"); a("s_mov_b32 s59, 0x00020000")
    a("s_lshr_b32 s36, s2, 2")
    a("s_lshl_b32 s36, s36, 2")
    a("v_mov_b32 v6, s36")
    a("s_and_b32 s36, s33, 15")
    a("s_lshl_b32 s36, 1, s36")
    a("v_mov_b32 v7, s36")
    a("s_mov_b64 exec, 1")
    a("buffer_atomic_or v7, v6, s[56:59], 0 offen sc1")
    a("s_mov_b64 exec, -1")
    if stamp:
        stamp_mid(a, 0)
    srd(a, 8, 84, D*S*2)
    srd(a, 12, 86, F*D*2)
    srd(a, 28, 4, 4096, add=WS_FLAGS)
    a("s_lshl_b32 s36, s33, 5")
    a("v_lshlrev_b32 v6, 2, v2")
    a("v_add_u32 v6, s36, v6")
    a("v_mov_b32 v7, 0")
    a("s_mov_b64 exec, 0xff")
    a("buffer_store_dword v7, v6, s[28:31], 0 offen")
    a("s_mov_b64 exec, -1")
    srd(a, 16, 82, D*4*2)
    srd(a, 28, 4, D*S*2, add=WS_KVT)
    a("s_lshl_b32 s37, s2, 6")
    a(f"s_lshl_b32 s38, s{S_WV}, 4")
    a("s_add_u32 s37, s37, s38")
    a("v_lshrrev_b32 v5, 4, v2")
    a("v_lshlrev_b32 v5, 2, v5")
    a("v_add_u32 v5, s37, v5")
    a("v_lshlrev_b32 v8, 11, v5")
    a("v_and_b32 v9, 15, v2")
    a("v_lshlrev_b32 v9, 4, v9")
    a("v_add_u32 v8, v8, v9")
    a("v_lshlrev_b32 v9, 2, v9")
    a("v_and_b32 v10, 15, v2")
    a("v_lshlrev_b32 v10, 10, v10")
    a("v_lshrrev_b32 v5, 4, v2")
    a("v_lshlrev_b32 v5, 3, v5")
    a("v_sub_u32 v10, v10, v5")
    a(f"s_lshl_b32 s38, s{S_WV}, 5")
    a("s_sub_u32 s38, 120, s38")
    a("v_add_u32 v10, s38, v10")
    a(f"s_lshl_b32 s38, s{S_WV}, 12")
    a("v_add_u32 v11, s38, v26")
    a("v_lshrrev_b32 v12, 3, v2")
    a(f"s_lshl_b32 s38, s{S_WV}, 5")
    a("v_add_u32 v12, s38, v12")
    a("v_lshlrev_b32 v12, 12, v12")
    a("v_and_b32 v13, 7, v2")
    a("v_lshl_add_u32 v12, v13, 4, v12")
    a("s_lshl_b32 s38, s2, 7")
    a("s_sub_u32 s38, 3968, s38")
    a("v_add_u32 v12, s38, v12")
    def kv_loads(B):
        for r in range(7):
            a(f"v_add_u32 v7, {((r-3)*2048) & 0xffffffff:#x}, v8")
            a(f"buffer_load_dwordx4 v[{B+4*r}:{B+4*r+3}], v7, s[20:23], s40 offen")
        for r in range(4):
            a(f"v_add_u32 v7, {r*2048:#x}, v8")
            a(f"buffer_load_dwordx4 v[{B+28+4*r}:{B+31+4*r}], v7, s[24:27], s40 offen")
        for i in range(4):
            a(f"buffer_load_dwordx4 v[{B+44+4*i}:{B+47+4*i}], v9, s[16:19], s41 offen offset:{16*i}")
    a("s_mov_b32 s40, 0"); a("s_mov_b32 s41, 0"); a("s_mov_b32 s42, 0"); a("s_mov_b32 s43, 0")
    a("s_mov_b32 s39, 8")
    kv_loads(64)
    a("s_waitcnt vmcnt(0)")
    a.label(f"{name}_kv")
    a(f"s_waitcnt vmcnt({6 if kvtouch else 4})")
    for i in range(60):
        a(f"v_mov_b32 v{128+i}, v{64+i}")
    a("s_add_u32 s40, s40, 256")
    a("s_add_u32 s41, s41, 1024")
    a("s_cmp_eq_u32 s39, 1")
    a(f"s_cbranch_scc1 {name}_kv2")
    kv_loads(64)
    a.label(f"{name}_kv2")
    if kvtouch:
        a("buffer_load_dword v62, v3, s[12:15], s43 offen")
        a("buffer_load_dword v62, v3, s[8:11], s43 offen")
    a(f"s_add_u32 s43, s43, {8192*128}")

    for p in range(4):
        B = 128; R = 192
        W = R; K = R + 8; t = R + 22; O = [R+24+i for i in range(8)]
        s0_, s1_, s2_, s3_ = B+44+4*p, B+45+4*p, B+46+4*p, B+47+4*p
        a(f"v_lshlrev_b32 v{W+0}, 16, v{s0_}");        a(f"v_lshlrev_b32 v{W+1}, 16, v{s2_}")
        a(f"v_and_b32 v{W+2}, 0xffff0000, v{s0_}");    a(f"v_and_b32 v{W+3}, 0xffff0000, v{s2_}")
        a(f"v_lshlrev_b32 v{W+4}, 16, v{s1_}");        a(f"v_lshlrev_b32 v{W+5}, 16, v{s3_}")
        a(f"v_and_b32 v{W+6}, 0xffff0000, v{s1_}");    a(f"v_and_b32 v{W+7}, 0xffff0000, v{s3_}")
        for r in range(7):
            a(f"v_lshlrev_b32 v{K+2*r}, 16, v{B+4*r+p}")
            a(f"v_and_b32 v{K+2*r+1}, 0xffff0000, v{B+4*r+p}")
        for i in range(4):
            a(f"v_pk_mul_f32 v[{t}:{t+1}], v[{K+2*i}:{K+2*i+1}], v[{W+6}:{W+7}]")
            a(f"v_pk_fma_f32 v[{t}:{t+1}], v[{K+2*(i+1)}:{K+2*(i+1)+1}], v[{W+4}:{W+5}], v[{t}:{t+1}]")
            a(f"v_pk_fma_f32 v[{t}:{t+1}], v[{K+2*(i+2)}:{K+2*(i+2)+1}], v[{W+2}:{W+3}], v[{t}:{t+1}]")
            a(f"v_pk_fma_f32 v[{t}:{t+1}], v[{K+2*(i+3)}:{K+2*(i+3)+1}], v[{W}:{W+1}], v[{t}:{t+1}]")
            a(f"v_cvt_pk_bf16_f32 v{t}, v{t}, v{t+1}")
            a(f"v_and_b32 v{t+1}, 0xffff0000, v{t}")
            a(f"v_lshlrev_b32 v{t}, 16, v{t}")
            a(f"v_lshlrev_b32 v14, 16, v{B+28+4*i+p}")
            a(f"v_and_b32 v15, 0xffff0000, v{B+28+4*i+p}")
            a(f"v_mul_f32 v{O[i]}, v{t}, v14")
            a(f"v_mul_f32 v{O[4+i]}, v{t+1}, v15")
        Q = R + 32 + 4*(p % 2)
        a(f"v_cvt_pk_bf16_f32 v{Q}, v{O[3]}, v{O[2]}")
        a(f"v_cvt_pk_bf16_f32 v{Q+1}, v{O[1]}, v{O[0]}")
        a(f"v_cvt_pk_bf16_f32 v{Q+2}, v{O[7]}, v{O[6]}")
        a(f"v_cvt_pk_bf16_f32 v{Q+3}, v{O[5]}, v{O[4]}")
        a(f"ds_write_b64 v10, v[{Q}:{Q+1}] offset:{(2*p)*128}")
        a(f"ds_write_b64 v10, v[{Q+2}:{Q+3}] offset:{(2*p+1)*128}")
    a("s_waitcnt lgkmcnt(0)")
    a("s_barrier")
    for i in range(4):
        a(f"ds_read_b128 v[{240+4*i}:{243+4*i}], v11 offset:{i*1024}")
    a("s_waitcnt lgkmcnt(0)")
    a("s_barrier")
    for i in range(4):
        a(f"v_add_u32 v7, {i*8*4096}, v12")
        a(f"buffer_store_dwordx4 v[{240+4*i}:{243+4*i}], v7, s[28:31], s42 offen")
    a(f"s_add_u32 s42, s42, {128*4096}")
    a("s_sub_u32 s39, s39, 1")
    a("s_cmp_lg_u32 s39, 0")
    a(f"s_cbranch_scc1 {name}_kv")
    if stamp:
        stamp_mid(a, 1)
        stamp_end(a, S_WV, 1)
    a.label(f"{name}_end")
    a("s_endpgm")
    return a.text() + kernel_desc(name, 512, 102, accum=256)
```

```python
from asmgen import *
from gen_common import *

STG = 32768
XB = 16384
WB = 8192
NS = 4
RING = STG * NS
CSOFF = RING
STALL = RING + 1024
LDS_BYTES = RING + 1024 + 2048
NH = 32

def gen_k1a(name="k1_kernel", PD=3, stamp=False, it_poll=4, it_post=2, poll_max=200000, nt0=5, kvtouch=True):
    a = Asm()
    a.raw(kernel_header(name))
    AF = 32; GA = 64; ONES = 192; BFA = 128; CSA = 192
    VA0, VA1, VB = 8, 9, 10
    VD = 12
    S_XSRD = 8; S_WSRD = 12; S_HSRD = 28
    S_WV = 32; S_XO = 33; S_WO = 34; S_CNT = 35
    S_SLOT = list(range(36, 44))
    S_RT = 44; S_CT = 45; S_RD = 47; S_DM = 48; S_DELTA = 49; S_OK = 50
    a("s_cmp_ge_u32 s2, 256")
    a(f"s_cbranch_scc1 {name}_end")
    if stamp:
        stamp_begin(a)
    a(f"s_load_dwordx2 s[4:5], s[0:1], {KA_WS}")
    a(f"s_load_dwordx4 s[52:55], s[0:1], {KA_W1}")
    a(f"s_load_dwordx4 s[92:95], s[0:1], {KA_Q}")
    a(f"s_load_dwordx2 s[90:91], s[0:1], {KA_DBG}")
    a("v_lshrrev_b32 v1, 6, v0")
    a("v_and_b32 v2, 63, v0")
    a("v_lshlrev_b32 v26, 4, v2")
    a(f"v_readfirstlane_b32 s{S_WV}, v1")
    a(f"s_cmp_lt_u32 s2, {NH}")
    a(f"s_cbranch_scc1 {name}_helper")
    a(f"s_sub_u32 s58, s2, {NH}")
    a("s_and_b32 s56, s58, 7")
    a("s_lshr_b32 s57, s58, 3")
    a("s_and_b32 s58, s56, 1")
    a("s_lshl_b32 s58, s58, 2")
    a("s_and_b32 s59, s57, 3")
    a(f"s_add_u32 s{S_RT}, s58, s59")
    a("s_lshr_b32 s58, s56, 1")
    a("s_mul_i32 s58, s58, 7")
    a("s_lshr_b32 s59, s57, 2")
    a(f"s_add_u32 s{S_CT}, s58, s59")
    a("v_lshrrev_b32 v3, 4, v2")
    a("v_sub_u32 v3, 0, v3")
    a("v_xor_b32 v3, v3, v2")
    a("v_and_b32 v3, 3, v3")
    a("v_lshrrev_b32 v4, 2, v2")
    a(f"s_lshl_b32 s56, s{S_RT}, 8")
    a(f"s_lshl_b32 s57, s{S_WV}, 6")
    a("s_add_u32 s56, s56, s57")
    a("v_add_u32 v4, s56, v4")
    a("v_lshlrev_b32 v4, 11, v4")
    a(f"v_lshl_add_u32 v{VD}, v3, 4, v4")
    for sl in range(4):
        if sl:
            a(f"v_add_u32 v{VD+sl}, {sl*32768}, v{VD}")
        a(f"s_lshl_b32 s{S_SLOT[sl]}, s{S_WV}, 12")
        a(f"s_add_u32 s{S_SLOT[sl]}, s{S_SLOT[sl]}, {sl*1024}")
    a("v_lshrrev_b32 v3, 4, v2")
    a("v_bfe_u32 v4, v2, 2, 2")
    a("v_and_b32 v5, 3, v2")
    a(f"s_and_b32 s56, s{S_WV}, 1")
    a("s_lshl_b32 s56, s56, 4")
    a("v_add_u32 v4, s56, v4")
    a("v_mul_u32_u24 v4, 0x1c00, v4")
    a(f"s_lshl_b32 s56, s{S_CT}, 8")
    a("v_lshl_add_u32 v4, v3, 6, v4")
    a("v_add_u32 v4, s56, v4")
    for sl in range(4):
        x = 2*((sl >> 1) & 1)
        a(f"v_xor_b32 v6, {x}, v5")
        a("v_lshlrev_b32 v6, 4, v6")
        a(f"v_add_u32 v6, {sl*4*7168}, v6")
        a(f"v_add_u32 v{VD+4+sl}, v4, v6")
        a(f"s_lshl_b32 s{S_SLOT[4+sl]}, s{S_WV}, 12")
        a(f"s_add_u32 s{S_SLOT[4+sl]}, s{S_SLOT[4+sl]}, {XB + sl*1024}")
    a("s_waitcnt lgkmcnt(0)")
    srd(a, S_XSRD, 92, S*D*2)
    a(f"s_cmp_lt_u32 s{S_WV}, 2")
    a(f"s_cselect_b32 s{S_WSRD}, s52, s54")
    a(f"s_cselect_b32 s{S_WSRD+1}, s53, s55")
    a(f"s_mov_b32 s{S_WSRD+2}, {D*F*2}")
    a(f"s_mov_b32 s{S_WSRD+3}, 0x00020000")
    def dma_ld(sl, tag):
        if sl < 4:
            a.vmem(f"buffer_load_dwordx4 v{VD+sl}, s[{S_XSRD}:{S_XSRD+3}], s{S_XO} offen lds", tag=tag)
        else:
            a.vmem(f"buffer_load_dwordx4 v{VD+sl}, s[{S_WSRD}:{S_WSRD+3}], s{S_WO} offen lds", tag=tag)
    a.vm = []
    for st in range(NS - 1):
        a(f"s_mov_b32 s{S_XO}, {st*64}")
        a(f"s_mov_b32 s{S_WO}, {st*32*7168}")
        for sl in range(8):
            a(f"s_add_u32 m0, s{S_SLOT[sl]}, {st*STG}")
            a("s_nop 0")
            dma_ld(sl, ("d", st))
    a(f"s_mov_b32 s{S_XO}, {(NS-1)*64}")
    a(f"s_mov_b32 s{S_WO}, {(NS-1)*32*7168}")
    a(f"s_mov_b32 s{S_DM}, {(NS-1)*STG}")
    a("v_lshrrev_b32 v3, 4, v2")
    a("v_bfe_u32 v4, v2, 2, 2")
    a("v_and_b32 v5, 3, v2")
    a("v_lshlrev_b32 v6, 6, v4")
    a("v_lshl_add_u32 v6, v5, 3, v6")
    a("v_lshl_add_u32 v6, v3, 11, v6")
    a(f"s_and_b32 s56, s{S_WV}, 1")
    a("s_lshl_b32 s56, s56, 9")
    a("v_add_u32 v6, s56, v6")
    a("v_and_b32 v7, 1, v3")
    a(f"v_lshl_add_u32 v{VA0}, v7, 5, v6")
    a("v_xor_b32 v7, 1, v7")
    a(f"v_lshl_add_u32 v{VA1}, v7, 5, v6")
    a("v_lshrrev_b32 v6, 2, v2")
    a("v_sub_u32 v6, 0, v6")
    a("v_xor_b32 v6, v6, v3")
    a("v_and_b32 v6, 3, v6")
    a("v_and_b32 v7, 15, v2")
    a(f"s_lshr_b32 s56, s{S_WV}, 1")
    a("s_lshl_b32 s56, s56, 7")
    a("v_add_u32 v7, s56, v7")
    a("v_lshlrev_b32 v7, 6, v7")
    a(f"v_lshl_add_u32 v{VB}, v6, 4, v7")
    for i in range(4):
        a(f"v_mov_b32 v{ONES+i}, 0x3f803f80")
    srd(a, 16, 52, D*F*2)
    srd(a, 20, 54, D*F*2)
    a(f"s_sub_u32 s60, s2, {NH}")
    a("s_lshl_b32 s60, s60, 2")
    a(f"s_add_u32 s60, s60, s{S_WV}")
    a("s_lshl_b32 s60, s60, 9")
    a("v_lshlrev_b32 v23, 7, v2")
    a("v_add_u32 v23, s60, v23")
    a("v_mov_b32 v24, 0x80000000")
    a("v_cmp_gt_u32 vcc, 4, v2")
    a(f"s_mov_b32 s24, {96*7168}")
    a("v_cndmask_b32 v23, v24, v23, vcc")
    for i in range(nt0):
        a(f"buffer_load_dword v25, v23, s[16:19], s24 offen")
        a(f"buffer_load_dword v25, v23, s[20:23], s24 offen")
        a(f"s_add_u32 s24, s24, {64*7168}")
    a(f"s_mov_b32 s{S_RD}, 0")
    a(f"s_mov_b32 s{S_OK}, 0")
    a("v_mov_b32 v31, 0")
    a("s_mov_b32 s56, s90"); a("s_mov_b32 s57, s91"); a("s_mov_b32 s58, 256"); a("s_mov_b32 s59, 0x00020000")
    a(f"s_lshl_b32 s60, s{S_RT}, 2")
    a("v_mov_b32 v27, s60")
    a.vm += [("u", 0)]*(2*nt0)
    pro_vm = list(a.vm)
    a(f"s_cmp_ge_u32 s{S_WV}, 2")
    a(f"s_cbranch_scc1 {name}_p1")

    order = []
    for j in range(4):
        order.append((0, j)); order.append((1, j))
    def rd_a1(ai, hf, tag):
        m, j = order[ai]
        base = VA0 if (j & 1) == 0 else VA1
        imm = XB + m*WB + hf*1024 + (j >> 1)*256
        a.lds(f"ds_read_b64_tr_b16 v[{AF+4*ai+2*hf}:{AF+4*ai+2*hf+1}], v{base} offset:{imm}", tag=tag)
    def rd_b(bs, bt, tag):
        r = BFA + 32*bs + 4*bt
        a.lds(f"ds_read_b128 a[{r}:{r+3}], v{VB} offset:{bt*1024}", tag=tag)
    def acc(m, j, bt):
        i = (j*8 + bt)*4
        return f"v[{GA+i}:{GA+i+3}]" if m == 0 else f"a[{i}:{i+3}]"
    def once(lbl, it, fn):
        a(f"s_cmp_lg_u32 s{S_CNT}, {it}")
        a(f"s_cbranch_scc1 {lbl}")
        fn()
        a.label(lbl)
    def post_loads():
        srd(a, 92, 4, S*8, add=WS_STATS)
        a(f"s_lshl_b32 s60, s{S_RT}, 11")
        a("v_lshlrev_b32 v3, 5, v2")
        a("v_add_u32 v3, s60, v3")
        a("buffer_load_dwordx4 v[240:243], v3, s[92:95], 0 offen sc1")
        a("buffer_load_dwordx4 v[244:247], v3, s[92:95], 0 offen offset:16 sc1")

    def path(ws):
        lbl = f"{name}_p{ws}"
        a.label(lbl)
        a.lgkm = []; a.vm = list(pro_vm)
        a.wait_vm(("d", 0))
        a("s_barrier")
        for ai in range(PD):
            rd_a1(ai, 0, ("a", 0, ai)); rd_a1(ai, 1, ("a", 0, ai))
        b_pos = []
        a.lgkm = []
        bi = 0
        for g in (5, 6, 7):
            a.lgkm += [("a", 0, g - 5), ("a", 0, g - 5)]
            for _ in range(3 if g < 7 else 2):
                rd_b(0, bi, ("b", 0, bi)); a.lgkm.pop(); a.lgkm.append(("b", 0, bi)); bi += 1
        a("s_waitcnt lgkmcnt(0)")
        model_l = list(a.lgkm)
        if stamp:
            stamp_mid(a, 0)
        def stage(ph, peel):
            a.wait_vm(("d", ph + 1))
            a("s_barrier")
            if ph == 0 and not peel and ws == 1:
                def poll():
                    a(f"s_cmp_lg_u32 s{S_WV}, 3")
                    a(f"s_cbranch_scc1 {lbl}_o6")
                    a("buffer_load_dword v31, v27, s[56:59], 0 offen sc1")
                once(f"{lbl}_o6", it_poll, poll)
                def post():
                    a(f"s_cmp_lg_u32 s{S_WV}, 3")
                    a(f"s_cbranch_scc1 {lbl}_o8")
                    a("v_readfirstlane_b32 s60, v31")
                    a("s_nop 3")
                    a("s_cmp_lg_u32 s60, 0xffff")
                    a(f"s_cbranch_scc1 {lbl}_o8")
                    post_loads()
                    a(f"s_mov_b32 s{S_OK}, 1")
                once(f"{lbl}_o8", it_post, post)
            gaps = [[] for _ in range(64)]
            for g in range(8):
                ga = g + PD
                tgt = (ga, ph) if ga < 8 else (ga - 8, 1 - ph)
                gaps[8*g + 0].append(lambda t=tgt: rd_a1(t[0], 0, ("a", t[1], t[0])))
                gaps[8*g + 1].append(lambda t=tgt: rd_a1(t[0], 1, ("a", t[1], t[0])))
            bi = 0
            for g in (5, 6, 7):
                for k in range(3 if g < 7 else 2):
                    gaps[8*g + 2 + k].append(lambda bi=bi: rd_b(1 - ph, bi, ("b", 1 - ph, bi)))
                    bi += 1
            for i in range(8):
                gaps[8*i + 5].append(lambda i=i: a(f"s_add_u32 m0, s{S_DM}, s{S_SLOT[i]}"))
                gaps[8*i + 6].append(lambda i=i: dma_ld(i, ("d", ph + NS - 1)))
            def adv():
                a(f"s_add_u32 s{S_XO}, s{S_XO}, 64")
                a(f"s_add_u32 s{S_WO}, s{S_WO}, {32*7168}")
                a(f"s_add_u32 s{S_DM}, s{S_DM}, {STG}")
                a(f"s_cmp_eq_u32 s{S_DM}, {STG*NS}")
                a(f"s_cselect_b32 s{S_DM}, 0, s{S_DM}")
            gaps[63].append(adv)
            sr = 16 if ph == 0 else 20
            gaps[62].append(lambda sr=sr: a.vmem(f"buffer_load_dword v25, v23, s[{sr}:{sr+3}], s24 offen", tag=("t", 0)))
            if ph == 1:
                gaps[63].append(lambda: a(f"s_add_u32 s24, s24, {64*7168}"))
            def rd_adv1():
                a(f"s_add_u32 s{S_DELTA}, s{S_RD}, {STG}")
                a(f"s_cmp_eq_u32 s{S_DELTA}, {STG*NS}")
                a(f"s_cselect_b32 s62, 0, s{S_DELTA}")
                a(f"s_sub_u32 s{S_DELTA}, s62, s{S_RD}")
                a(f"s_mov_b32 s{S_RD}, s62")
            gaps[8*3 + 3].append(rd_adv1)
            gaps[8*4 + 2].append(lambda: a(f"v_add_u32 v{VA0}, s{S_DELTA}, v{VA0}"))
            gaps[8*4 + 3].append(lambda: a(f"v_add_u32 v{VA1}, s{S_DELTA}, v{VA1}"))
            gaps[8*4 + 4].append(lambda: a(f"v_add_u32 v{VB}, s{S_DELTA}, v{VB}"))
            first = peel and ph == 0
            for g in range(8):
                m, j = order[g]
                tags = [("a", ph, g)]
                if g == 0:
                    tags += [("b", ph, bt) for bt in range(8)]
                a.wait_lgkm(*tags)
                for bt in range(8):
                    r = BFA + 32*ph + 4*bt
                    a(f"v_mfma_f32_16x16x32_bf16 {acc(m,j,bt)}, v[{AF+4*g}:{AF+4*g+3}], a[{r}:{r+3}], {'0' if first else acc(m,j,bt)}")
                    if bt == 7 and (g >> 2) == ws:
                        c = CSA + 4*(g & 3)
                        a(f"v_mfma_f32_16x16x32_bf16 a[{c}:{c+3}], v[{AF+4*g}:{AF+4*g+3}], v[{ONES}:{ONES+3}], {'0' if first else 'a[%d:%d]' % (c, c+3)}")
                    for f in gaps[8*g + bt]:
                        f()
        a.lgkm = list(model_l)
        stage(0, True); stage(1, True)
        a.vm = sum([[("d", k)]*8 + [("t", 0)] for k in range(1, NS - 1)], [])
        a(f"s_mov_b32 s{S_CNT}, 15")
        a.label(f"{lbl}_loop")
        entry_l = list(a.lgkm); entry_v = list(a.vm)
        stage(0, False); stage(1, False)
        assert a.lgkm == entry_l, (a.lgkm, entry_l)
        def strip(q):
            q = list(q)
            while q and q[0][0] != "d":
                q.pop(0)
            return q
        assert strip([(t, k - 2 if t == "d" else k) for (t, k) in a.vm]) == strip(entry_v), (a.vm, entry_v)
        a(f"s_sub_u32 s{S_CNT}, s{S_CNT}, 1")
        a(f"s_cmp_lg_u32 s{S_CNT}, 0")
        a(f"s_cbranch_scc1 {lbl}_loop")
        a.lgkm = []; a.vm = []
        if stamp:
            stamp_mid(a, 1)
        a("v_lshrrev_b32 v3, 4, v2")
        a("v_lshlrev_b32 v3, 4, v3")
        a(f"s_and_b32 s60, s{S_WV}, 1")
        a("s_lshl_b32 s60, s60, 9")
        a(f"s_add_u32 s60, s60, {CSOFF}")
        a("v_add_u32 v3, s60, v3")
        a("s_nop 7")
        a("s_mov_b32 s60, 0x00010001")
        a("s_mov_b32 s61, 0x00010001")
        a("s_mov_b64 exec, s[60:61]")
        for k in range(4):
            g = 4*ws + k
            a(f"ds_write_b128 v3, a[{CSA+4*k}:{CSA+4*k+3}] offset:{g*64}")
        a("s_mov_b64 exec, -1")
        if ws == 1:
            a(f"s_cmp_lg_u32 s{S_WV}, 3")
            a(f"s_cbranch_scc1 {name}_epi")
            a(f"s_cmp_eq_u32 s{S_OK}, 1")
            a(f"s_cbranch_scc1 {lbl}_fb")
            a(f"s_mov_b32 s62, {poll_max}")
            a.label(f"{lbl}_poll")
            a("buffer_load_dword v31, v27, s[56:59], 0 offen sc1")
            a("s_waitcnt vmcnt(0)")
            a("v_readfirstlane_b32 s60, v31")
            a("s_nop 3")
            a("s_cmp_eq_u32 s60, 0xffff")
            a(f"s_cbranch_scc1 {lbl}_pd")
            a("s_sleep 8")
            a("s_sub_u32 s62, s62, 1")
            a("s_cmp_lg_u32 s62, 0")
            a(f"s_cbranch_scc1 {lbl}_poll")
            a.label(f"{lbl}_pd")
            post_loads()
            a.label(f"{lbl}_fb")
            a("s_waitcnt vmcnt(0)")
            a(f"v_lshlrev_b32 v3, 5, v2")
            a(f"v_add_u32 v3, {STALL}, v3")
            a("ds_write_b128 v3, v[240:243]")
            a("ds_write_b128 v3, v[244:247] offset:16")
        else:
            a(f"s_branch {name}_epi")
    path(0)
    path(1)
    a.label(f"{name}_epi")
    a("s_waitcnt lgkmcnt(0)")
    a("s_barrier")
    if stamp: a("s_memtime s[92:93]")
    srd(a, S_HSRD, 4, S*F*2, add=WS_H)
    a("v_lshrrev_b32 v7, 4, v2")
    a("v_lshlrev_b32 v3, 4, v7")
    a(f"s_and_b32 s60, s{S_WV}, 1")
    a("s_lshl_b32 s60, s60, 9")
    a(f"s_add_u32 s60, s60, {CSOFF}")
    a("v_add_u32 v3, s60, v3")
    CS = 32
    for g in range(8):
        a(f"ds_read_b128 v[{CS+4*g}:{CS+4*g+3}], v3 offset:{g*64}")
    a("v_and_b32 v5, 15, v2")
    a(f"s_lshr_b32 s60, s{S_WV}, 1")
    a("s_lshl_b32 s60, s60, 10")
    a(f"s_add_u32 s60, s60, {STALL}")
    a("v_lshl_add_u32 v5, v5, 3, s60")
    ST = 208
    for bt in range(8):
        a(f"ds_read_b64 v[{ST+2*bt}:{ST+2*bt+1}], v5 offset:{bt*128}")
    a(f"s_lshl_b32 s54, s{S_RT}, 4")
    a(f"s_lshr_b32 s55, s{S_WV}, 1")
    a("s_lshl_b32 s55, s55, 3")
    a("s_add_u32 s54, s54, s55")
    a("s_mul_i32 s54, s54, 112")
    a(f"s_lshl_b32 s55, s{S_CT}, 2")
    a("s_add_u32 s54, s54, s55")
    a(f"s_and_b32 s55, s{S_WV}, 1")
    a("s_lshl_b32 s55, s55, 1")
    a("s_add_u32 s54, s54, s55")
    a("s_lshl_b32 s54, s54, 10")
    a("v_add_u32 v3, s54, v26")
    a("s_mov_b32 s56, 0xbfb8aa3b")
    a("s_waitcnt lgkmcnt(0)")
    def hcalc(j, bt, T, O):
        G = GA + (j*8 + bt)*4
        U = (j*8 + bt)*4
        C1 = CS + 4*(2*j); C3 = CS + 4*(2*j + 1)
        NM, C1S, I2 = 8, 10, 12
        for r in range(4):
            a(f"v_accvgpr_read_b32 v{T+4+r}, a{U+r}")
        for r in (0, 2):
            a(f"v_pk_fma_f32 v[{G+r}:{G+r+1}], v[{C1+r}:{C1+r+1}], v[{NM}:{NM+1}], v[{G+r}:{G+r+1}] op_sel_hi:[1,0,1]")
        for r in (0, 2):
            a(f"v_pk_mul_f32 v[{T+r}:{T+r+1}], v[{G+r}:{G+r+1}], v[{C1S}:{C1S+1}] op_sel_hi:[1,0]")
        for r in range(4):
            a(f"v_exp_f32 v{T+r}, v{T+r}")
        for r in (0, 2):
            a(f"v_pk_fma_f32 v[{T+4+r}:{T+5+r}], v[{C3+r}:{C3+r+1}], v[{NM}:{NM+1}], v[{T+4+r}:{T+5+r}] op_sel_hi:[1,0,1]")
        for r in (0, 2):
            a(f"v_pk_fma_f32 v[{T+r}:{T+r+1}], v[{T+r}:{T+r+1}], v[{I2}:{I2+1}], v[{I2}:{I2+1}] op_sel_hi:[1,0,0]")
        for r in (0, 2):
            a(f"v_pk_mul_f32 v[{T+4+r}:{T+5+r}], v[{T+4+r}:{T+5+r}], v[{G+r}:{G+r+1}]")
        for r in range(4):
            a(f"v_rcp_f32 v{T+r}, v{T+r}")
        a("s_nop 0")
        for r in (0, 2):
            a(f"v_pk_mul_f32 v[{T+4+r}:{T+5+r}], v[{T+4+r}:{T+5+r}], v[{T+r}:{T+r+1}]")
        a(f"v_cvt_pk_bf16_f32 v{O}, v{T+4}, v{T+5}")
        a(f"v_cvt_pk_bf16_f32 v{O+1}, v{T+6}, v{T+7}")
    k = 0
    for bt in range(8):
        a(f"v_sub_f32 v8, 0, v{ST+2*bt}")
        a(f"v_rcp_f32 v10, v{ST+2*bt+1}")
        a(f"v_mul_f32 v12, v{ST+2*bt+1}, v{ST+2*bt+1}")
        a("v_mul_f32 v10, s56, v10")
        for p in range(2):
            O = 240 + (k % 2) * 4
            hcalc(2*p, bt, 224, O)
            hcalc(2*p+1, bt, 232, O + 2)
            a(f"buffer_store_dwordx4 v[{O}:{O+3}], v3, s[{S_HSRD}:{S_HSRD+3}], 0 offen offset:{p*1024}")
            k += 1
        if bt < 7:
            a(f"v_add_u32 v3, {112*1024}, v3")
    if stamp:
        a("s_memtime s[94:95]")
        a("s_waitcnt lgkmcnt(0)")
        a("s_sub_u32 s96, s94, s92")
        a("s_mov_b32 s94, 0")
        a("s_sub_u32 s92, s92, s70")
        stamp_end(a, S_WV, 1)
        a("v_mov_b32 v12, s92"); a("v_mov_b32 v13, s94")
        a("buffer_store_dwordx2 v[12:13], v5, s[76:79], 0 offen offset:24")
        a("v_mov_b32 v14, s96")
        a("buffer_store_dword v14, v5, s[76:79], 0 offen offset:20")
    a("s_endpgm")

    a.label(f"{name}_helper")
    a.lgkm = []; a.vm = []
    a(f"s_load_dwordx4 s[80:83], s[0:1], {KA_V}")
    a(f"s_load_dwordx2 s[84:85], s[0:1], {KA_SSMK}")
    a(f"s_load_dwordx2 s[86:87], s[0:1], {KA_W2}")
    a("s_lshl_b32 s33, s2, 2")
    a(f"s_add_u32 s33, s33, s{S_WV}")
    a("s_lshl_b32 s34, s33, 13")
    a("v_lshlrev_b32 v3, 7, v2")
    a("v_add_u32 v3, s34, v3")
    a("s_waitcnt lgkmcnt(0)")
    srd(a, 8, 92, S*D*2)
    srd(a, 12, 52, D*F*2)
    srd(a, 16, 54, D*F*2)
    a("s_lshl_b32 s35, s33, 4")
    a("v_and_b32 v4, 15, v2")
    a("v_add_u32 v4, s35, v4")
    a("v_lshlrev_b32 v4, 11, v4")
    a("v_lshrrev_b32 v5, 4, v2")
    a("v_lshl_add_u32 v4, v5, 4, v4")
    def touch(sr, n):
        for t in range(n):
            a(f"s_mov_b32 s36, {t*8192*128}")
            a(f"buffer_load_dword v62, v3, s[{sr}:{sr+3}], s36 offen")
    for t in range(32):
        a(f"buffer_load_dwordx4 v[{64+4*t}:{67+4*t}], v4, s[8:11], 0 offen offset:{t*64}")
    srd(a, 20, 94, S*D*2)
    srd(a, 24, 80, S*D*2)
    def xreduce(v, t):
        a(f"v_mov_b32 v{t}, v{v}")
        a("s_nop 1")
        a(f"v_permlane16_swap_b32 v{v}, v{t}")
        a("s_nop 1")
        a(f"v_add_f32 v{v}, v{v}, v{t}")
        a(f"v_mov_b32 v{t}, v{v}")
        a("s_nop 1")
        a(f"v_permlane32_swap_b32 v{v}, v{t}")
        a("s_nop 1")
        a(f"v_add_f32 v{v}, v{v}, v{t}")
    a("v_mov_b32 v32, 0"); a("v_mov_b32 v33, 0"); a("v_mov_b32 v34, 0"); a("v_mov_b32 v35, 0")
    for d in range(128):
        if d % 16 == 0:
            t = d // 4
            a(f"s_waitcnt vmcnt({31 - (t + 3)})")
        T = 40 + 2*(d % 4)
        a(f"v_lshlrev_b32 v{T}, 16, v{64+d}")
        a(f"v_and_b32 v{T+1}, 0xffff0000, v{64+d}")
        A_ = 32 + 2*(d % 2)
        a(f"v_pk_add_f32 v[{A_}:{A_+1}], v[{A_}:{A_+1}], v[{T}:{T+1}]")
    a("v_pk_add_f32 v[32:33], v[32:33], v[34:35]")
    a("v_add_f32 v48, v32, v33")
    xreduce(48, 49)
    a("v_mul_f32 v48, 0x3a800000, v48")
    a("v_sub_f32 v50, 0, v48")
    a("v_mov_b32 v32, 0"); a("v_mov_b32 v33, 0"); a("v_mov_b32 v34, 0"); a("v_mov_b32 v35, 0")
    for d in range(128):
        T = 40 + 2*(d % 4)
        a(f"v_lshlrev_b32 v{T}, 16, v{64+d}")
        a(f"v_and_b32 v{T+1}, 0xffff0000, v{64+d}")
        a(f"v_pk_add_f32 v[{T}:{T+1}], v[{T}:{T+1}], v[50:51] op_sel_hi:[1,0]")
        A_ = 32 + 2*(d % 2)
        a(f"v_pk_fma_f32 v[{A_}:{A_+1}], v[{T}:{T+1}], v[{T}:{T+1}], v[{A_}:{A_+1}]")
    a("v_pk_add_f32 v[32:33], v[32:33], v[34:35]")
    a("v_add_f32 v51, v32, v33")
    xreduce(51, 49)
    a("v_mul_f32 v51, 0x3a800000, v51")
    a("v_cvt_pk_bf16_f32 v52, v48, v51")
    a("v_lshlrev_b32 v20, 16, v52")
    a("v_and_b32 v51, 0xffff0000, v52")
    a("v_add_f32 v51, 0x3727c5ac, v51")
    a("v_cvt_pk_bf16_f32 v52, v51, v51")
    a("v_lshlrev_b32 v51, 16, v52")
    a("v_sqrt_f32 v51, v51")
    a("s_nop 0")
    a("v_cvt_pk_bf16_f32 v52, v51, v51")
    a("v_lshlrev_b32 v21, 16, v52")
    srd(a, 28, 4, S*8, add=WS_STATS)
    a("s_lshl_b32 s36, s35, 3")
    a("v_and_b32 v6, 15, v2")
    a("v_lshlrev_b32 v6, 3, v6")
    a("v_add_u32 v6, s36, v6")
    a("s_mov_b64 exec, 0xffff")
    a("buffer_store_dwordx2 v[20:21], v6, s[28:31], 0 offen sc1")
    a("s_mov_b64 exec, -1")
    a("s_waitcnt vmcnt(0)")
    a("s_mov_b32 s56, s90"); a("s_mov_b32 s57, s91"); a("s_mov_b32 s58, 256"); a("s_mov_b32 s59, 0x00020000")
    a("s_lshr_b32 s36, s2, 2")
    a("s_lshl_b32 s36, s36, 2")
    a("v_mov_b32 v6, s36")
    a("s_and_b32 s36, s33, 15")
    a("s_lshl_b32 s36, 1, s36")
    a("v_mov_b32 v7, s36")
    a("s_mov_b64 exec, 1")
    a("buffer_atomic_or v7, v6, s[56:59], 0 offen sc1")
    a("s_mov_b64 exec, -1")
    if stamp:
        stamp_mid(a, 0)
    srd(a, 8, 84, D*S*2)
    srd(a, 12, 86, F*D*2)
    srd(a, 28, 4, 4096, add=WS_FLAGS)
    a("s_lshl_b32 s36, s33, 5")
    a("v_lshlrev_b32 v6, 2, v2")
    a("v_add_u32 v6, s36, v6")
    a("v_mov_b32 v7, 0")
    a("s_mov_b64 exec, 0xff")
    a("buffer_store_dword v7, v6, s[28:31], 0 offen")
    a("s_mov_b64 exec, -1")
    srd(a, 16, 82, D*4*2)
    srd(a, 28, 4, D*S*2, add=WS_KVT)
    a("s_lshl_b32 s37, s2, 6")
    a(f"s_lshl_b32 s38, s{S_WV}, 4")
    a("s_add_u32 s37, s37, s38")
    a("v_lshrrev_b32 v5, 4, v2")
    a("v_lshlrev_b32 v5, 2, v5")
    a("v_add_u32 v5, s37, v5")
    a("v_lshlrev_b32 v8, 11, v5")
    a("v_and_b32 v9, 15, v2")
    a("v_lshlrev_b32 v9, 4, v9")
    a("v_add_u32 v8, v8, v9")
    a("v_lshlrev_b32 v9, 2, v9")
    a("v_and_b32 v10, 15, v2")
    a("v_lshlrev_b32 v10, 10, v10")
    a("v_lshrrev_b32 v5, 4, v2")
    a("v_lshlrev_b32 v5, 3, v5")
    a("v_sub_u32 v10, v10, v5")
    a(f"s_lshl_b32 s38, s{S_WV}, 5")
    a("s_sub_u32 s38, 120, s38")
    a("v_add_u32 v10, s38, v10")
    a(f"s_lshl_b32 s38, s{S_WV}, 12")
    a("v_add_u32 v11, s38, v26")
    a("v_lshrrev_b32 v12, 3, v2")
    a(f"s_lshl_b32 s38, s{S_WV}, 5")
    a("v_add_u32 v12, s38, v12")
    a("v_lshlrev_b32 v12, 12, v12")
    a("v_and_b32 v13, 7, v2")
    a("v_lshl_add_u32 v12, v13, 4, v12")
    a("s_lshl_b32 s38, s2, 7")
    a("s_sub_u32 s38, 3968, s38")
    a("v_add_u32 v12, s38, v12")
    def kv_loads(B):
        for r in range(7):
            a(f"v_add_u32 v7, {((r-3)*2048) & 0xffffffff:#x}, v8")
            a(f"buffer_load_dwordx4 a[{B+4*r}:{B+4*r+3}], v7, s[20:23], s40 offen")
        for r in range(4):
            a(f"v_add_u32 v7, {r*2048:#x}, v8")
            a(f"buffer_load_dwordx4 a[{B+28+4*r}:{B+31+4*r}], v7, s[24:27], s40 offen")
        for i in range(4):
            a(f"buffer_load_dwordx4 a[{B+44+4*i}:{B+47+4*i}], v9, s[16:19], s41 offen offset:{16*i}")
        a("s_add_u32 s40, s40, 256")
        a("s_add_u32 s41, s41, 1024")
    a("s_mov_b32 s40, 0"); a("s_mov_b32 s41, 0"); a("s_mov_b32 s42, 0"); a("s_mov_b32 s43, 0")
    a("s_mov_b32 s39, 4")
    kv_loads(0)
    kv_loads(64)
    a("s_waitcnt vmcnt(0)")
    a.label(f"{name}_kv")
    for half in range(2):
        AB = 64*half
        a("s_waitcnt vmcnt(27)")
        for i in range(60):
            a(f"v_accvgpr_read_b32 v{128+i}, a{AB+i}")
        kv_loads(AB)
        a("buffer_load_dword v62, v3, s[12:15], s43 offen")
        a("buffer_load_dword v62, v3, s[8:11], s43 offen")
        a(f"s_add_u32 s43, s43, {8192*128}")
        for p in range(4):
            B = 128; R = 192
            W = R; K = R + 8; t = R + 22; O = [R+24+i for i in range(8)]
            s0_, s1_, s2_, s3_ = B+44+4*p, B+45+4*p, B+46+4*p, B+47+4*p
            a(f"v_lshlrev_b32 v{W+0}, 16, v{s0_}");        a(f"v_lshlrev_b32 v{W+1}, 16, v{s2_}")
            a(f"v_and_b32 v{W+2}, 0xffff0000, v{s0_}");    a(f"v_and_b32 v{W+3}, 0xffff0000, v{s2_}")
            a(f"v_lshlrev_b32 v{W+4}, 16, v{s1_}");        a(f"v_lshlrev_b32 v{W+5}, 16, v{s3_}")
            a(f"v_and_b32 v{W+6}, 0xffff0000, v{s1_}");    a(f"v_and_b32 v{W+7}, 0xffff0000, v{s3_}")
            for r in range(7):
                a(f"v_lshlrev_b32 v{K+2*r}, 16, v{B+4*r+p}")
                a(f"v_and_b32 v{K+2*r+1}, 0xffff0000, v{B+4*r+p}")
            for i in range(4):
                a(f"v_pk_mul_f32 v[{t}:{t+1}], v[{K+2*i}:{K+2*i+1}], v[{W+6}:{W+7}]")
                a(f"v_pk_fma_f32 v[{t}:{t+1}], v[{K+2*(i+1)}:{K+2*(i+1)+1}], v[{W+4}:{W+5}], v[{t}:{t+1}]")
                a(f"v_pk_fma_f32 v[{t}:{t+1}], v[{K+2*(i+2)}:{K+2*(i+2)+1}], v[{W+2}:{W+3}], v[{t}:{t+1}]")
                a(f"v_pk_fma_f32 v[{t}:{t+1}], v[{K+2*(i+3)}:{K+2*(i+3)+1}], v[{W}:{W+1}], v[{t}:{t+1}]")
                a(f"v_cvt_pk_bf16_f32 v{t}, v{t}, v{t+1}")
                a(f"v_and_b32 v{t+1}, 0xffff0000, v{t}")
                a(f"v_lshlrev_b32 v{t}, 16, v{t}")
                a(f"v_lshlrev_b32 v14, 16, v{B+28+4*i+p}")
                a(f"v_and_b32 v15, 0xffff0000, v{B+28+4*i+p}")
                a(f"v_mul_f32 v{O[i]}, v{t}, v14")
                a(f"v_mul_f32 v{O[4+i]}, v{t+1}, v15")
            Q = R + 32 + 4*(p % 2)
            a(f"v_cvt_pk_bf16_f32 v{Q}, v{O[3]}, v{O[2]}")
            a(f"v_cvt_pk_bf16_f32 v{Q+1}, v{O[1]}, v{O[0]}")
            a(f"v_cvt_pk_bf16_f32 v{Q+2}, v{O[7]}, v{O[6]}")
            a(f"v_cvt_pk_bf16_f32 v{Q+3}, v{O[5]}, v{O[4]}")
            a(f"ds_write_b64 v10, v[{Q}:{Q+1}] offset:{(2*p)*128}")
            a(f"ds_write_b64 v10, v[{Q+2}:{Q+3}] offset:{(2*p+1)*128}")
        a("s_waitcnt lgkmcnt(0)")
        a("s_barrier")
        DR = 240 if half == 0 else 64
        for i in range(4):
            a(f"ds_read_b128 v[{DR+4*i}:{DR+4*i+3}], v11 offset:{i*1024}")
        a("s_waitcnt lgkmcnt(0)")
        a("s_barrier")
        for i in range(4):
            a(f"v_add_u32 v7, {i*8*4096}, v12")
            a(f"buffer_store_dwordx4 v[{DR+4*i}:{DR+4*i+3}], v7, s[28:31], s42 offen")
        a(f"s_add_u32 s42, s42, {128*4096}")
    a("s_sub_u32 s39, s39, 1")
    a("s_cmp_lg_u32 s39, 0")
    a(f"s_cbranch_scc1 {name}_kv")
    if stamp:
        stamp_mid(a, 1)
        stamp_end(a, S_WV, 1)
    a.label(f"{name}_end")
    a("s_endpgm")
    return a.text() + kernel_desc(name, 512, 102, accum=256)
```
